```python
import torch

def _softmax(x, axis=-1):
    return torch.softmax(x, dim=axis)

def _gelu(x):
    return torch.nn.functional.gelu(x, approximate='tanh')

def _silu(x):
    return torch.nn.functional.silu(x)

def _sigmoid(x):
    return torch.sigmoid(x)

def _layernorm(x, axis=-1, eps=1e-05):
    m = x.mean(dim=axis, keepdim=True)
    v = x.var(dim=axis, keepdim=True, unbiased=False)
    return (x - m) / torch.sqrt(v + eps)

def _scatter_add(tgt, idx, src, axis=0):
    return tgt.clone().index_add_(axis, idx, src)

def _segment_sum(src, seg, n):
    out = torch.zeros((n,) + src.shape[1:], dtype=src.dtype)
    return out.index_add_(0, seg, src)

def _pad(x, pw):
    flat = tuple((v for pair in reversed(pw) for v in pair))
    return torch.nn.functional.pad(x, flat)
kernel_name = 'adaLN_cond__grouped_kv_mqa__glu_gated_geglu__prompt'

def setup_inputs():

    _w = lambda a: (lambda t: t.to(torch.bfloat16) if t.is_floating_point() else t)(torch.as_tensor(a))

    def _A_setup():
        B, S, D, H = (1, 2048, 640, 32)
        Dh = D // H
        return {'x': _w((lambda *s: torch.randn(*s, dtype=torch.bfloat16) * 0.05)(B, S, D)), 'wq': _w((lambda *s: torch.randn(*s, dtype=torch.bfloat16) * 0.05)(D, H * Dh)), 'wk': _w((lambda *s: torch.randn(*s, dtype=torch.bfloat16) * 0.05)(D, Dh)), 'wv': _w((lambda *s: torch.randn(*s, dtype=torch.bfloat16) * 0.05)(D, Dh)), 'wo': _w((lambda *s: torch.randn(*s, dtype=torch.bfloat16) * 0.05)(H * Dh, D))}
    _A_in = _A_setup()

    def _B_setup():
        B, S, Dm, Df = (1, 2048, 640, 1536)
        return {'x': _w((lambda *s: torch.randn(*s, dtype=torch.bfloat16) * 0.05)(B, S, Dm)), 'w_gate': _w((lambda *s: torch.randn(*s, dtype=torch.bfloat16) * 0.8)(Dm, Df) * Dm ** (-0.5)), 'w_up': _w((lambda *s: torch.randn(*s, dtype=torch.bfloat16) * 0.8)(Dm, Df) * Dm ** (-0.5)), 'w_down': _w((lambda *s: torch.randn(*s, dtype=torch.bfloat16) * 0.8)(Df, Dm) * Df ** (-0.5))}
    _B_in = _B_setup()
    return {'A_x': _A_in['x'], 'A_wq': _A_in['wq'], 'A_wk': _A_in['wk'], 'A_wv': _A_in['wv'], 'A_wo': _A_in['wo'], 'B_x': _B_in['x'], 'B_w_gate': _B_in['w_gate'], 'B_w_up': _B_in['w_up'], 'B_w_down': _B_in['w_down'], 'c': _w((lambda *s: torch.randn(*s, dtype=torch.bfloat16) * 0.1)(1, 640) * 8.0), 'w_mod': _w((lambda *s: torch.randn(*s, dtype=torch.bfloat16) * 0.1)(640, 6 * 640) * 640 ** (-0.5) * 8.0)}

def reference(A_x, A_wq, A_wk, A_wv, A_wo, B_x, B_w_gate, B_w_up, B_w_down, c, w_mod):

    def _A_ref(x, wq, wk, wv, wo):
        B, S, D = x.shape
        H = 32
        Dh = D // H
        q = (lambda x, *d: x.permute(*d))((x @ wq).reshape(B, S, H, Dh), 0, 2, 1, 3)
        k = x @ wk
        v = x @ wv
        scores = torch.einsum('bhqd,bkd->bhqk', q, k) * Dh ** (-0.5)
        p = _softmax(scores, axis=-1)
        o = torch.einsum('bhqk,bkd->bhqd', p, v)
        return (lambda x, *d: x.permute(*d))(o, 0, 2, 1, 3).reshape(B, S, H * Dh) @ wo

    def _B_ref(x, w_gate, w_up, w_down):
        g = torch.einsum('bsd,df->bsf', x, w_gate)
        u = torch.einsum('bsd,df->bsf', x, w_up)
        h = _gelu(g) * u
        return torch.einsum('bsf,fd->bsd', h, w_down)
    x = A_x
    mod = (_silu(c) @ w_mod).reshape(c.shape[0], 6, 1, -1)
    sa, ca, ga, sb, cb, gb = (mod[:, 0].clone(), mod[:, 1].clone(), mod[:, 2].clone(), mod[:, 3].clone(), mod[:, 4].clone(), mod[:, 5].clone())
    h = _layernorm(x, axis=-1) * (1 + ca) + sa
    x = x + ga * _A_ref(h, A_wq, A_wk, A_wv, A_wo)
    h = _layernorm(x, axis=-1) * (1 + cb) + sb
    x = x + gb * _B_ref(h, B_w_gate, B_w_up, B_w_down)
    return x
```

```python
from emit import *

KA = dict(x=0, wq=8, wk=16, wv=24, wo=32, wg=48, wu=56, wd=64, c=72, wmod=80, out=88, dbg=96, ws=104)
NBYTES = dict(x=2048*1280, wq=640*1280, wk=640*40, wv=640*40, wo=640*1280, wg=640*3072, wu=640*3072,
              wd=1536*1280, c=1280, wmod=640*7680, out=2048*1280, dbg=256)

WS_MOD   = 0x0
WS_MODB  = 0x4000
WS_STATS = 0x8000
WS_KV    = 0x28000
WS_WKV   = 0x51000
WS_WQ    = 0x60000
WS_WO    = 0x128000
WS_WD    = 0x1F0000
WS_WGU   = 0x3D0000
WS_H     = 0x7A8000
WS_O     = 0xA28000
WS_X1    = 0xCA8000
WS_Y     = 0xF28000
WS_HM    = 0x11A8000
WS_END   = 0x17A8000
KV_TILE = 2624
GU_BLOCK = 246 * 1024

def load_ptr(A, name, sreg):
    A(f"s_load_dwordx2 {s(sreg,2)}, s[0:1], {KA[name]}")

def make_srd(A, srd, ptr, nbytes, add=0):
    if add:
        A(f"s_add_u32 {s(srd)}, {s(ptr)}, {add}")
        A(f"s_addc_u32 {s(srd+1)}, {s(ptr+1)}, 0")
    elif srd != ptr:
        A(f"s_mov_b32 {s(srd)}, {s(ptr)}")
        A(f"s_mov_b32 {s(srd+1)}, {s(ptr+1)}")
    A(f"s_mov_b32 {s(srd+2)}, {nbytes}")
    A(f"s_mov_b32 {s(srd+3)}, 0x20000")

def wave_id(A, sdst, vtmp):
    A(f"v_lshrrev_b32 {v(vtmp)}, 6, v0")
    A(f"v_readfirstlane_b32 {s(sdst)}, {v(vtmp)}")

def dma(A, vaddr, srd, soff, lds_base_sreg, lds_const, tag, imm=0, set_m0=True, sc=False):
    if set_m0:
        if lds_base_sreg is None:
            A(f"s_mov_b32 m0, {lds_const}")
        else:
            A(f"s_add_u32 m0, {s(lds_base_sreg)}, {lds_const}")
    o = f" offset:{imm}" if imm else ""
    A.vmem(f"buffer_load_dwordx4 {v(vaddr)}, {s(srd,4)}, {soff} offen{o}{' sc1' if sc else ''} lds", tag)

def f16_src_voffset(A, vdst, vlane, pitch, t0, t1):
    A(f"v_bfe_u32 {v(t0)}, {v(vlane)}, 3, 2")
    A(f"v_lshlrev_b32 {v(t0)}, 3, {v(t0)}")
    A(f"v_lshrrev_b32 {v(t1)}, 5, {v(vlane)}")
    A(f"v_lshl_add_u32 {v(t0)}, {v(t1)}, 2, {v(t0)}")
    A(f"v_bfe_u32 {v(t1)}, {v(vlane)}, 1, 2")
    A(f"v_add_u32 {v(t0)}, {v(t0)}, {v(t1)}")
    A(f"v_mul_u32_u24 {v(t0)}, {pitch}, {v(t0)}")
    A(f"v_and_b32 {v(t1)}, 1, {v(vlane)}")
    A(f"v_lshl_add_u32 {v(vdst)}, {v(t1)}, 4, {v(t0)}")

def sum_halves32(A, x, t):
    A(f"v_mov_b32 {v(t)}, {v(x)}")
    A(f"v_permlane32_swap_b32 {v(x)}, {v(t)}")
    A(f"v_add_f32 {v(x)}, {v(x)}, {v(t)}")
def sum_halves16(A, x, t):
    A(f"v_mov_b32 {v(t)}, {v(x)}")
    A(f"v_permlane16_swap_b32 {v(x)}, {v(t)}")
    A(f"v_add_f32 {v(x)}, {v(x)}, {v(t)}")

def unpack_lo(A, d, src): A(f"v_lshlrev_b32 {v(d)}, 16, {v(src)}")
def unpack_hi(A, d, src): A(f"v_and_b32 {v(d)}, 0xffff0000, {v(src)}")
```

```python
import re

def v(i, n=1):
    return f"v{i}" if n == 1 else f"v[{i}:{i+n-1}]"
def a(i, n=1):
    return f"a{i}" if n == 1 else f"a[{i}:{i+n-1}]"
def s(i, n=1):
    return f"s{i}" if n == 1 else f"s[{i}:{i+n-1}]"

_REG = re.compile(r"^-?\|?(?:abs\()?([vas])(?:(\d+)|\[(\d+):(\d+)\])\)?\|?$")

def regs_of(tok):
    tok = tok.strip()
    if tok in ("vcc",): return {("s", 106), ("s", 107)}
    if tok == "vcc_lo": return {("s", 106)}
    if tok == "vcc_hi": return {("s", 107)}
    if tok == "exec": return {("s", 126), ("s", 127)}
    if tok == "m0": return {("s", 124)}
    m = _REG.match(tok)
    if not m: return set()
    k = m.group(1)
    if m.group(2) is not None:
        return {(k, int(m.group(2)))}
    return {(k, i) for i in range(int(m.group(3)), int(m.group(4)) + 1)}

TRANS = ("v_exp_f32", "v_log_f32", "v_rcp_f32", "v_rsq_f32", "v_sqrt_f32", "v_sin_f32", "v_cos_f32", "v_rcp_iflag_f32")
MFMA_PASSES = {"v_mfma_f32_32x32x16_bf16": 8, "v_mfma_f32_16x16x32_bf16": 4, "v_mfma_f32_32x32x8bf16_1k": 8,
               "v_mfma_f32_32x32x4bf16_1k": 16}

class Ins:
    __slots__ = ("text", "op", "ops", "kind", "defs", "uses", "srcc", "srcab", "dpp", "states", "label", "target", "passes", "stdata", "lds_dma")
    def __init__(self, text):
        self.text = text
        self.label = None; self.target = None; self.passes = 0
        self.defs = set(); self.uses = set(); self.srcc = set(); self.srcab = set(); self.stdata = set()
        self.dpp = False; self.states = 1; self.lds_dma = False
        t = text.split(";")[0].strip()
        if not t or t.startswith("."):
            self.kind = "none"; self.op = ""; self.ops = []; self.states = 0; return
        if t.endswith(":"):
            self.kind = "label"; self.label = t[:-1]; self.op = ""; self.ops = []; self.states = 0; return
        parts = t.split(None, 1)
        op = parts[0]
        self.op = op = re.sub(r"_(e32|e64|dpp|sdwa)$", "", op)
        rest = parts[1] if len(parts) > 1 else ""
        toks = [x.strip() for x in rest.split(",")] if rest else []
        mods = ""
        if toks:
            last = toks[-1].split(None, 1)
            if len(last) > 1:
                toks[-1] = last[0]; mods = last[1]
        if "op_sel" in rest and "[" in mods and "," in rest:
            m = re.search(r"\s(op_sel|op_sel_hi|neg_lo|neg_hi):", rest)
            if m:
                toks = [x.strip() for x in rest[:m.start()].split(",")]; mods = rest[m.start():]
        self.ops = toks
        R = [regs_of(x) for x in toks]
        if op.startswith("v_mfma"):
            self.kind = "mfma"; self.passes = MFMA_PASSES[op]
            self.defs = R[0]; self.srcab = R[1] | R[2]; self.srcc = R[3]; self.uses = self.srcab | self.srcc
        elif op.startswith("v_"):
            self.kind = "valu"
            self.dpp = ("quad_perm" in mods or "row_" in mods or "wave_" in mods)
            if op.startswith("v_cmp"):
                self.defs = R[0]; self.uses = set().union(*R[1:])
            elif op in ("v_permlane32_swap_b32", "v_permlane16_swap_b32"):
                self.defs = R[0] | R[1]; self.uses = R[0] | R[1]; self.kind = "permlane"
            elif op in ("v_add_co_u32", "v_sub_co_u32", "v_addc_co_u32", "v_subb_co_u32", "v_mad_u64_u32"):
                self.defs = R[0] | R[1]; self.uses = set().union(*R[2:])
            elif op in ("v_readfirstlane_b32", "v_readlane_b32"):
                self.defs = R[0]; self.uses = set().union(*R[1:]); self.kind = "readlane"
            else:
                self.defs = R[0]; self.uses = set().union(*R[1:]) if len(R) > 1 else set()
                if op in ("v_fmac_f32", "v_writelane_b32", "v_pk_fmac_f16", "v_dot2c_f32_bf16") or "UNUSED_PRESERVE" in mods or self.dpp:
                    self.uses |= R[0]
                if op == "v_cndmask_b32" and len(toks) == 3:
                    self.uses |= regs_of("vcc")
        elif op.startswith("buffer_") or op.startswith("global_"):
            self.kind = "vmem"
            words = rest.split()
            if op.startswith("buffer_load") and " lds" in " " + mods:
                self.lds_dma = True; self.uses = set().union(*R) | regs_of("m0")
            elif op.startswith("global_load_lds"):
                self.lds_dma = True; self.uses = set().union(*R) | regs_of("m0")
            elif op.startswith("buffer_load"):
                self.defs = R[0]; self.uses = set().union(*R[1:])
            elif op.startswith("global_load"):
                self.defs = R[0]; self.uses = set().union(*R[1:])
            elif op.startswith("buffer_store"):
                self.uses = set().union(*R)
                if len(R[0]) >= 3: self.stdata = R[0]
            elif op.startswith("global_store"):
                self.uses = set().union(*R)
                if len(R[1]) >= 3: self.stdata = R[1]
            elif "atomic" in op:
                self.uses = set().union(*R)
                if "sc0" in mods: self.defs = R[0]
            else:
                self.uses = set().union(*R) if R else set()
        elif op.startswith("ds_"):
            self.kind = "ds"
            if op.startswith("ds_read") or op.startswith("ds_bpermute") or op.startswith("ds_swizzle") or "_rtn" in op:
                self.defs = R[0]; self.uses = set().union(*R[1:])
            else:
                self.uses = set().union(*R)
        elif op == "s_nop":
            self.kind = "salu"; self.states = int(toks[0], 0) + 1
        elif op.startswith("s_cbranch") or op == "s_branch":
            self.kind = "branch"; self.target = toks[0]
        elif op == "s_endpgm":
            self.kind = "end"
        elif op.startswith("s_load") or op.startswith("s_buffer_load") or op.startswith("s_memtime") or op.startswith("s_memrealtime"):
            self.kind = "smem"; self.defs = R[0]; self.uses = set().union(*R[1:]) if len(R) > 1 else set()
        elif op.startswith("s_"):
            self.kind = "salu"
            if op.startswith("s_cmp") or op in ("s_waitcnt", "s_barrier", "s_setprio", "s_sleep", "s_bitcmp0_b32", "s_bitcmp1_b32"):
                self.uses = set().union(*R) if R else set()
            elif "saveexec" in op:
                self.defs = R[0] | regs_of("exec"); self.uses = R[1] | regs_of("exec")
            else:
                self.defs = R[0] if R else set(); self.uses = set().union(*R[1:]) if len(R) > 1 else set()
        else:
            raise ValueError("unknown op " + text)

def vregs(rs): return {r for r in rs if r[0] in "va"}
def sregs(rs): return {r for r in rs if r[0] == "s"}

def need(p, c):
    n = 0
    pv = p.kind in ("valu", "permlane", "readlane")
    cv = c.kind in ("valu", "permlane", "readlane")
    if pv:
        dv = vregs(p.defs); ds_ = sregs(p.defs)
        if c.kind == "mfma" and dv & c.uses: n = max(n, 2)
        if c.kind == "readlane" and dv & c.uses: n = max(n, 1)
        if (c.kind == "permlane" or c.dpp) and dv & c.uses: n = max(n, 2)
        if p.op in TRANS and cv and c.op not in TRANS and dv & c.uses: n = max(n, 1)
        if p.op in TRANS and cv and c.op in TRANS and dv & c.uses: n = max(n, 1)
        if ds_:
            if cv and ds_ & c.uses: n = max(n, 4 if c.op in ("v_readlane_b32", "v_writelane_b32") else 2)
            if c.kind == "vmem" and ds_ & c.uses: n = max(n, 5)
            if c.kind in ("salu", "smem", "branch") and ds_ & c.uses: n = max(n, 2)
            if c.kind == "branch" and "vcc" in c.op and ds_ & regs_of("vcc"): n = max(n, 2)
    if p.kind == "mfma":
        P = p.passes
        D = p.defs
        if c.kind == "mfma":
            if D & c.srcc:
                if D == c.srcc and c.passes == P: n = max(n, 2 if P == 2 else 0)
                else: n = max(n, P + 2)
            if D & c.srcab: n = max(n, P + 4)
            if D & c.defs and not (D == c.defs and c.passes == P) and not (D & c.srcc):
                n = max(n, P + 2)
        elif cv:
            if D & (c.uses | c.defs): n = max(n, P + 4)
            if p.srcc & c.defs: n = max(n, P - 1)
        elif c.kind in ("vmem", "ds"):
            if D & (c.uses | c.defs): n = max(n, P + 4)
            if p.srcc & c.defs: n = max(n, P - 1)
    if p.kind == "salu" and ("s", 124) in p.defs and c.lds_dma: n = max(n, 1)
    if p.kind == "vmem" and p.stdata:
        if cv and p.stdata & c.defs: n = max(n, 2)
        elif c.kind in ("mfma", "ds", "vmem") and p.stdata & c.defs: n = max(n, 1)
    return n

MAXD = 22

class Asm:
    def __init__(self):
        self.lines = []
        self.vm = []
        self.uid = 0
    def __call__(self, text):
        for t in text.split("\n"):
            t = t.strip()
            if t: self.lines.append(t)
    def label(self, name): self.lines.append(name + ":")
    def newlabel(self, base):
        self.uid += 1
        return f"L{base}_{self.uid}"
    def vm_reset(self): self.vm = []
    def vmem(self, text, tag=None):
        self(text); self.vm.append(tag)
    def vm_wait(self, tag, extra=""):
        idx = [i for i, t in enumerate(self.vm) if t == tag]
        if not idx:
            if extra: self(f"s_waitcnt {extra}")
            return
        n = len(self.vm) - 1 - idx[-1]
        assert n <= 63
        self(f"s_waitcnt vmcnt({n}) {extra}".strip())
        self.vm = self.vm[idx[-1] + 1:]
    def vm_drain(self, extra=""):
        self(f"s_waitcnt vmcnt(0) {extra}".strip()); self.vm = []

def pad(lines, verbose=False):
    ins = [Ins(t) for t in lines]
    total = 0
    state = {}
    def rebuild():
        labels = {x.label: i for i, x in enumerate(ins) if x.kind == "label"}
        preds = {}
        for i, x in enumerate(ins):
            if x.kind == "branch":
                assert x.target in labels, x.text
                preds.setdefault(labels[x.target], []).append(i)
        state["preds"] = preds
    def walk(i, dist, c, seen, fall):
        best = 0
        j = i - 1
        preds = state["preds"]
        while j >= 0 and dist < MAXD:
            x = ins[j]
            if x.kind == "label":
                for pj in preds.get(j, []):
                    key = (pj, dist)
                    if key not in seen:
                        seen.add(key)
                        best = max(best, walk(pj + 1, dist, c, seen, False))
                j -= 1; fall = True; continue
            if x.kind == "none":
                j -= 1; continue
            if fall and (x.kind == "end" or x.op == "s_branch"): break
            d = need(x, c) - dist
            if d > best: best = d
            dist += x.states
            fall = True
            j -= 1
        return best
    for _round in range(20):
        rebuild()
        changed = False
        i = 0
        while i < len(ins):
            c = ins[i]
            if c.kind not in ("none", "label", "end"):
                d = walk(i, 0, c, set(), True)
                if d > 0:
                    if verbose: print("pad", d, "before", c.text)
                    k = d; new = []
                    while k > 0:
                        m = min(k, 16); new.append(Ins(f"s_nop {m-1}")); k -= m
                    ins[i:i] = new
                    i += len(new); total += d; changed = True
                    rebuild()
            i += 1
        if not changed: break
    else:
        raise RuntimeError("pad did not converge")
    return [x.text for x in ins], total

def kernel_text(name, asm, vgpr, accum, sgpr=102):
    body, nops = pad(asm.lines)
    head = f".globl {name}\n.p2align 8\n.type {name},@function\n{name}:\n"
    kd = (f".amdhsa_kernel {name}\n  .amdhsa_next_free_vgpr {vgpr}\n  .amdhsa_next_free_sgpr {sgpr}\n"
          f"  .amdhsa_accum_offset {accum}\n  .amdhsa_group_segment_fixed_size 0\n  .amdhsa_kernarg_size 112\n"
          f"  .amdhsa_user_sgpr_count 2\n  .amdhsa_user_sgpr_kernarg_segment_ptr 1\n"
          f"  .amdhsa_system_sgpr_workgroup_id_x 1\n  .amdhsa_float_denorm_mode_32 3\n.end_amdhsa_kernel\n")
    return head + "\n".join(body) + "\n", kd, nops
```

```python
from common import *

def loader(A, KS, R, srd, s_w, s_wave4, vlane16, stmp, lds0=0, after_first=None, before=None):
    C = KS // 4
    R = R or C
    A.vm_reset()
    A(f"s_mul_i32 {s(stmp)}, {s(s_wave4)}, 5120")
    A(f"s_add_u32 {s(stmp+1)}, {s(stmp)}, {s(s_w)}")
    if lds0: A(f"s_add_u32 {s(stmp)}, {s(stmp)}, {lds0}")
    def issue(c):
        slot = (c % R) * 20480
        dma(A, vlane16, srd, s(stmp+1), stmp, slot, f"c{c}")
        for i in range(1, 4): dma(A, vlane16, srd, s(stmp+1), stmp, slot, f"c{c}", imm=1024*i, set_m0=False)
        A(f"s_add_u32 {s(stmp+2)}, {s(stmp+1)}, 4096")
        dma(A, vlane16, srd, s(stmp+2), stmp, slot+4096, f"c{c}")
        if c + 1 < C: A(f"s_add_u32 {s(stmp+1)}, {s(stmp+1)}, 20480")
    if before: before(A)
    for c in range(min(R, C)): issue(c)
    if after_first: after_first(A)
    for c in range(C):
        A.vm_wait(f"c{c}")
        A("s_barrier")
        if c >= 1 and c - 1 + R < C: issue(c - 1 + R)

def compute(A, KS, R, srd, s_b, vlane16, VB, NB, VA, VACC, vld, lds0=0, after_b=None):
    C = KS // 4
    R = R or C
    A.vm_reset()
    def bload(ks):
        if ks % 4 == 0 and ks: A(f"s_add_u32 {s(s_b)}, {s(s_b)}, 4096")
        A.vmem(f"buffer_load_dwordx4 {v(VB+4*(ks%NB),4)}, {v(vlane16)}, {s(srd,4)}, {s(s_b)} offen offset:{(ks%4)*1024}", f"b{ks}")
    for ks in range(min(NB, KS)): bload(ks)
    for j in range(3):
        A(f"v_add_u32 {v(vld+j)}, {lds0 + j*61440}, {v(vlane16)}")
    if after_b: after_b(A)
    def aread(ks):
        off = ((ks // 4) % R) * 20480 + (ks % 4) * 5120
        for i in range(5):
            o = off + 1024*i
            A(f"ds_read_b128 {v(VA+20*(ks&1)+4*i,4)}, {v(vld + o//61440)} offset:{o%61440}")
    A("s_barrier")
    aread(0)
    for ks in range(KS):
        if ks + 1 < KS:
            if (ks + 1) % 4 == 0:
                A("s_waitcnt lgkmcnt(0)\ns_barrier")
            aread(ks + 1)
        first = True
        for i in range(5):
            lg = f"lgkmcnt({(5 if ks+1 < KS else 0) + 4 - i})"
            if (ks + 1) % 4 == 0 and ks + 1 < KS: lg = ""
            if first:
                A.vm_wait(f"b{ks}", lg); first = False
            elif lg: A(f"s_waitcnt {lg}")
            A(f"v_mfma_f32_16x16x32_bf16 {v(VACC+4*i,4)}, {v(VA+20*(ks&1)+4*i,4)}, {v(VB+4*(ks%NB),4)}, {'0' if ks == 0 else v(VACC+4*i,4)}")
        if ks + NB < KS: bload(ks + NB)

def tile_ids(A, s_tg, s_ng):
    A(f"s_and_b32 {s(s_tg)}, s2, 7\ns_lshl_b32 {s(s_tg)}, {s(s_tg)}, 2\ns_lshr_b32 {s(s_ng)}, s2, 6\ns_add_u32 {s(s_tg)}, {s(s_tg)}, {s(s_ng)}")
    A(f"s_bfe_u32 {s(s_ng)}, s2, 0x30003")
```

```python
from common import *

NAME = "prep0_kernel"
GRID = 296; BLOCK = 256; LDS = 4*5*1024 + 4*512 + 4096

def transpose_f16(A, n, vtr, lds_sreg, regs, srd_dst, vdst_off, sdst, tag):
    A.vm_wait(tag)
    for f in range(n):
        A(f"ds_read_b64_tr_b16 {v(regs+4*f,2)}, {v(vtr)} offset:{f*1024}")
        A(f"ds_read_b64_tr_b16 {v(regs+4*f+2,2)}, {v(vtr)} offset:{f*1024+512}")
    for f in range(n):
        A(f"s_waitcnt lgkmcnt({2*(n-1-f)})")
        if f % 4 == 0 and f: A(f"s_add_u32 {s(sdst)}, {s(sdst)}, 4096")
        A.vmem(f"buffer_store_dwordx4 {v(regs+4*f,4)}, {v(vdst_off)}, {s(srd_dst,4)}, {s(sdst)} offen offset:{(f%4)*1024}", "st")

def gen():
    A = Asm()
    Lend, Lwq, Lkv = "Lp0_end", "Lp0_wq", "Lp0_kv"
    SW = 3
    SRD_WS, SRD_A, SRD_B = 8, 12, 16
    A(f"s_cmp_ge_u32 s2, {GRID}")
    A(f"s_cbranch_scc1 {Lend}")
    load_ptr(A, "ws", 4); load_ptr(A, "wmod", 6); load_ptr(A, "c", 20); load_ptr(A, "wq", 22)
    load_ptr(A, "wk", 24); load_ptr(A, "wv", 26)
    wave_id(A, SW, 1)
    VL = 1
    A(f"v_and_b32 {v(VL)}, 63, v0")
    A(f"s_mul_i32 s28, {s(SW)}, 5120")
    A(f"v_lshl_add_u32 v2, {v(VL)}, 3, s28")
    A(f"v_lshlrev_b32 v3, 4, {v(VL)}")
    A("s_waitcnt lgkmcnt(0)")
    make_srd(A, SRD_WS, 4, WS_END)
    A("s_cmp_ge_u32 s2, 256")
    A(f"s_cbranch_scc1 {Lwq}")
    A("s_lshr_b32 s29, s2, 5\ns_lshl_b32 s29, s29, 3\ns_and_b32 s30, s2, 7\ns_add_u32 s29, s29, s30")
    A("s_bfe_u32 s30, s2, 0x20003")
    A("s_lshl_b32 s31, s29, 2\ns_add_u32 s31, s31, s30")
    A("s_cmp_ge_u32 s31, 240")
    A(f"s_cbranch_scc1 {Lkv}")
    make_srd(A, SRD_A, 6, NBYTES["wmod"])
    make_srd(A, SRD_B, 20, NBYTES["c"])
    A.vm_reset()
    A(f"v_lshlrev_b32 v4, 3, {v(VL)}")
    A(f"s_mul_i32 s32, {s(SW)}, 320")
    A(f"v_min_u32 v5, 312, v4")
    A.vmem(f"buffer_load_dwordx2 v[6:7], v5, {s(SRD_B,4)}, s32 offen", "c")
    f16_src_voffset(A, 8, VL, 7680, 9, 10)
    A(f"s_mul_i32 s33, {s(SW)}, {5*32*7680}")
    A("s_lshl_b32 s34, s31, 5\ns_add_u32 s33, s33, s34")
    for f in range(5):
        dma(A, 8, SRD_A, "s33", 28, f*1024, "w")
        if f < 4: A(f"s_add_u32 s33, s33, {32*7680}")
    A.vm_wait("c")
    unpack_lo(A, 12, 6); unpack_hi(A, 13, 6); unpack_lo(A, 14, 7); unpack_hi(A, 15, 7)
    A("s_mov_b32 s35, 0xbfb8aa3b")
    for i in range(4): A(f"v_mul_f32 {v(16+i)}, s35, {v(12+i)}")
    for i in range(4): A(f"v_exp_f32 {v(16+i)}, {v(16+i)}")
    for i in range(4): A(f"v_add_f32 {v(16+i)}, 1.0, {v(16+i)}")
    for i in range(4): A(f"v_rcp_f32 {v(16+i)}, {v(16+i)}")
    for i in range(4): A(f"v_mul_f32 {v(12+i)}, {v(12+i)}, {v(16+i)}")
    A("v_cvt_pk_bf16_f32 v6, v12, v13\nv_cvt_pk_bf16_f32 v7, v14, v15")
    SB = 20480
    A(f"s_lshl_b32 s36, {s(SW)}, 9\ns_add_u32 s36, s36, {SB}")
    A("v_add_u32 v5, s36, v4")
    A("ds_write_b64 v5, v[6:7]")
    A(f"v_lshrrev_b32 v5, 4, {v(VL)}\nv_lshl_add_u32 v5, v5, 4, s36")
    A("s_waitcnt lgkmcnt(0)")
    for f in range(5): A(f"ds_read_b128 {v(20+4*f,4)}, v5 offset:{f*64}")
    A.vm_wait("w")
    for f in range(5):
        A(f"ds_read_b64_tr_b16 {v(40+4*f,2)}, v2 offset:{f*1024}")
        A(f"ds_read_b64_tr_b16 {v(42+4*f,2)}, v2 offset:{f*1024+512}")
    for f in range(5):
        A(f"s_waitcnt lgkmcnt({2*(4-f)})")
        A(f"v_mfma_f32_16x16x32_bf16 v[60:63], {v(40+4*f,4)}, {v(20+4*f,4)}, {'0' if f == 0 else 'v[60:63]'}")
    RB = 22528
    A(f"s_lshl_b32 s36, {s(SW)}, 10\ns_add_u32 s36, s36, {RB}")
    A("v_add_u32 v5, s36, v3")
    A("ds_write_b128 v5, v[60:63]")
    A("s_waitcnt lgkmcnt(0)\ns_barrier")
    A("v_cmp_gt_u32 vcc, 16, v0")
    A("s_and_saveexec_b64 s[38:39], vcc")
    A(f"s_cbranch_execz {Lend}")
    A("v_lshrrev_b32 v5, 2, v0\nv_lshlrev_b32 v5, 8, v5\nv_and_b32 v6, 3, v0\nv_lshl_add_u32 v5, v6, 2, v5")
    for w in range(4): A(f"ds_read_b32 {v(12+w)}, v5 offset:{RB+w*1024}")
    A("s_waitcnt lgkmcnt(0)")
    A("v_add_f32 v12, v12, v13\nv_add_f32 v14, v14, v15\nv_add_f32 v12, v12, v14")
    A("v_cvt_pk_bf16_f32 v13, v12, v12\nv_lshlrev_b32 v12, 16, v13")
    A("s_mul_i32 s36, s31, 1639\ns_lshr_b32 s36, s36, 16")
    A("s_cmp_eq_u32 s36, 1\ns_cselect_b32 s37, 1, 0\ns_cmp_eq_u32 s36, 4\ns_cselect_b32 s37, 1, s37")
    A("s_cmp_eq_u32 s37, 0")
    A("s_cbranch_scc1 Lp0_noone")
    A("v_add_f32 v12, 1.0, v12\nv_cvt_pk_bf16_f32 v13, v12, v12\nv_lshlrev_b32 v12, 16, v13")
    A.label("Lp0_noone")
    A("s_lshl_b32 s36, s31, 6\nv_lshl_add_u32 v5, v0, 2, s36")
    A(f"buffer_store_dword v12, v5, {s(SRD_WS,4)}, 0 offen offset:{WS_MOD}")
    A(f"s_lshl_b32 s36, s31, 5\ns_add_u32 s36, s36, {WS_MODB}\nv_lshl_add_u32 v5, v0, 1, s36")
    A(f"buffer_store_short v13, v5, {s(SRD_WS,4)}, 0 offen")
    A("s_endpgm")
    A.label(Lkv)
    A("s_sub_u32 s31, s31, 240\ns_cmp_ge_u32 s31, 15")
    A(f"s_cbranch_scc1 {Lend}")
    A(f"s_lshl_b32 s31, s31, 2\ns_add_u32 s31, s31, {s(SW)}")
    A("s_mul_i32 s32, s31, 21846\ns_lshr_b32 s32, s32, 16")
    A("s_mul_i32 s33, s32, 3\ns_sub_u32 s33, s31, s33")
    A(f"v_and_b32 v4, 15, {v(VL)}\ns_lshl_b32 s33, s33, 4\nv_add_u32 v4, s33, v4\nv_min_u32 v4, 39, v4")
    A(f"v_lshrrev_b32 v5, 4, {v(VL)}\nv_lshlrev_b32 v5, 3, v5\ns_lshl_b32 s32, s32, 5\nv_add_u32 v5, s32, v5")
    A("v_mul_u32_u24 v5, 40, v5")
    A("v_cmp_gt_u32 vcc, 20, v4")
    A("v_subrev_u32 v6, 20, v4")
    A("v_cndmask_b32 v4, v6, v4, vcc")
    A("v_lshl_add_u32 v5, v4, 1, v5")
    A("v_mov_b32 v6, s26\nv_mov_b32 v7, s24\nv_cndmask_b32 v6, v6, v7, vcc")
    A("v_mov_b32 v7, s27\nv_mov_b32 v8, s25\nv_cndmask_b32 v7, v7, v8, vcc")
    A("v_add_co_u32 v6, vcc, v6, v5\nv_addc_co_u32 v7, vcc, 0, v7, vcc")
    for j in range(8): A(f"global_load_ushort {v(12+j)}, v[6:7], off offset:{40*j}")
    A("s_waitcnt vmcnt(0)")
    for j in range(4): A(f"v_lshl_or_b32 {v(20+j)}, {v(13+2*j)}, 16, {v(12+2*j)}")
    A(f"s_lshl_b32 s31, s31, 10\ns_add_u32 s31, s31, {WS_WKV}")
    A(f"buffer_store_dwordx4 v[20:23], v3, {s(SRD_WS,4)}, s31 offen")
    A("s_endpgm")
    A.label(Lwq)
    make_srd(A, SRD_A, 22, NBYTES["wq"])
    A.vm_reset()
    A("s_sub_u32 s29, s2, 256\ns_lshr_b32 s30, s29, 1")
    A(f"s_and_b32 s29, s29, 1\ns_lshl_b32 s29, s29, 2\ns_add_u32 s29, s29, {s(SW)}")
    f16_src_voffset(A, 8, VL, 1280, 9, 10)
    A(f"s_mul_i32 s33, s30, {32*1280}\ns_mul_i32 s34, s29, 160\ns_add_u32 s33, s33, s34")
    for f in range(5):
        dma(A, 8, SRD_A, "s33", 28, f*1024, "w")
        if f < 4: A("s_add_u32 s33, s33, 32")
    A(f"s_mul_i32 s34, s29, 20\ns_add_u32 s34, s34, s30\ns_mul_i32 s34, s34, 5120\ns_add_u32 s34, s34, {WS_WQ}")
    transpose_f16(A, 5, 2, 28, 20, SRD_WS, 3, 34, "w")
    A.label(Lend)
    A("s_endpgm")
    return A, 64, 64
```

```python
from common import *

NAME = "ln1kv_kernel"
GRID = 256; BLOCK = 320; LDS = 15360 + 512

def gen():
    A = Asm()
    Lend = "Lk1_end"
    SW = 3; SRD_WS, SRD_X = 8, 12
    VL, VG, VT, VU = 1, 2, 3, 4
    X, CA, SA, W, ACC, XF = 8, 16, 32, 48, 96, 120
    T0, T1, T2, T3 = 136, 137, 138, 139
    A(f"s_cmp_ge_u32 s2, {GRID}")
    A(f"s_cbranch_scc1 {Lend}")
    load_ptr(A, "ws", 4); load_ptr(A, "x", 6)
    wave_id(A, SW, 1)
    A(f"v_and_b32 {v(VL)}, 63, v0")
    A(f"v_lshrrev_b32 {v(VG)}, 4, {v(VL)}\nv_and_b32 {v(VT)}, 7, {v(VL)}\nv_bfe_u32 {v(VU)}, {v(VL)}, 3, 1")
    A(f"v_lshlrev_b32 v5, 5, {v(VU)}\nv_lshl_add_u32 v5, {v(VG)}, 3, v5")
    A(f"s_lshl_b32 s20, {s(SW)}, 7\nv_add_u32 v5, s20, v5")
    A(f"v_mul_u32_u24 v6, 1280, {v(VT)}\nv_lshl_add_u32 v6, v5, 1, v6")
    A("v_lshlrev_b32 v7, 2, v5")
    A("s_mul_i32 s21, s2, 10240")
    A("s_waitcnt lgkmcnt(0)")
    make_srd(A, SRD_WS, 4, WS_END); make_srd(A, SRD_X, 6, NBYTES["x"])
    A.vm_reset()
    for i in range(2):
        A.vmem(f"buffer_load_dwordx4 {v(X+4*i,4)}, v6, {s(SRD_X,4)}, s21 offen offset:{128*i}", "x")
    A(f"s_mov_b32 s22, {WS_MOD + 2560}")
    for i in range(2):
        for q in range(2):
            A.vmem(f"buffer_load_dwordx4 {v(CA+8*i+4*q,4)}, v7, {s(SRD_WS,4)}, s22 offen offset:{256*i+16*q}", "m")
            A.vmem(f"buffer_load_dwordx4 {v(SA+8*i+4*q,4)}, v7, {s(SRD_WS,4)}, 0 offen offset:{WS_MOD+256*i+16*q}", "m")
    A(f"v_lshlrev_b32 v5, 4, {v(VL)}")
    A(f"s_mul_i32 s22, {s(SW)}, 12288\ns_add_u32 s22, s22, {WS_WKV}")
    for f in range(12):
        if f and f % 4 == 0: A("s_add_u32 s22, s22, 4096")
        A.vmem(f"buffer_load_dwordx4 {v(W+4*f,4)}, v5, {s(SRD_WS,4)}, s22 offen offset:{(f%4)*1024}", f"w{f//6}")
    A.vm_wait("x")
    for r in range(8):
        unpack_lo(A, XF+2*r, X+r); unpack_hi(A, XF+2*r+1, X+r)
    A(f"v_add_f32 {v(T0)}, {v(XF)}, {v(XF+1)}\nv_mul_f32 {v(T1)}, {v(XF)}, {v(XF)}\nv_fmac_f32 {v(T1)}, {v(XF+1)}, {v(XF+1)}")
    for r in range(2, 16):
        A(f"v_add_f32 {v(T0)}, {v(T0)}, {v(XF+r)}\nv_fmac_f32 {v(T1)}, {v(XF+r)}, {v(XF+r)}")
    for t in (T0, T1):
        A(f"v_add_f32_dpp {v(t)}, {v(t)}, {v(t)} row_ror:8 row_mask:0xf bank_mask:0xf")
    sum_halves16(A, T0, T2); sum_halves16(A, T1, T3)
    sum_halves32(A, T0, T2); sum_halves32(A, T1, T3)
    SB = 15360
    A(f"s_lshl_b32 s22, {s(SW)}, 6\ns_add_u32 s22, s22, {SB}")
    A(f"v_lshl_add_u32 {v(T2)}, {v(VT)}, 3, s22")
    A(f"ds_write_b64 {v(T2)}, {v(T0,2)}")
    A(f"v_lshlrev_b32 {v(T2)}, 3, {v(VT)}")
    A("s_waitcnt lgkmcnt(0)\ns_barrier")
    for w in range(5): A(f"ds_read_b64 {v(ACC+2*w,2)}, {v(T2)} offset:{SB+64*w}")
    A("s_waitcnt lgkmcnt(0)")
    for q in range(2):
        A(f"v_add_f32 {v(ACC+q)}, {v(ACC+q)}, {v(ACC+2+q)}\nv_add_f32 {v(ACC+4+q)}, {v(ACC+4+q)}, {v(ACC+6+q)}")
        A(f"v_add_f32 {v(ACC+q)}, {v(ACC+q)}, {v(ACC+8+q)}\nv_add_f32 {v(ACC+q)}, {v(ACC+q)}, {v(ACC+4+q)}")
    A(f"s_mov_b32 s22, 0x3acccccd")
    A(f"v_mul_f32 {v(T0)}, s22, {v(ACC)}\nv_mul_f32 {v(T1)}, s22, {v(ACC+1)}")
    A(f"v_fma_f32 {v(T1)}, -{v(T0)}, {v(T0)}, {v(T1)}")
    A(f"v_max_f32 {v(T1)}, 0, {v(T1)}\nv_add_f32 {v(T1)}, 0x3727c5ac, {v(T1)}")
    A(f"v_rsq_f32 {v(T1)}, {v(T1)}")
    A(f"v_mul_f32 {v(T0)}, {v(T0)}, {v(T1)}")
    A.vm_wait("m")
    for r in range(16):
        A(f"v_fma_f32 {v(XF+r)}, {v(XF+r)}, {v(T1)}, -{v(T0)}")
        A(f"v_fma_f32 {v(XF+r)}, {v(XF+r)}, {v(CA+r)}, {v(SA+r)}")
    for r in range(8): A(f"v_cvt_pk_bf16_f32 {v(X+r)}, {v(XF+2*r)}, {v(XF+2*r+1)}")
    A(f"s_lshr_b32 s22, s2, 1\ns_mul_i32 s22, s22, 20480\ns_lshl_b32 s23, {s(SW)}, 12\ns_add_u32 s22, s22, s23")
    A(f"s_and_b32 s23, s2, 1\ns_lshl_b32 s23, s23, 7\ns_add_u32 s22, s22, s23\ns_add_u32 s22, s22, {WS_H}")
    A(f"v_lshlrev_b32 v6, 10, {v(VU)}\nv_lshl_add_u32 v6, {v(VG)}, 8, v6\nv_lshl_add_u32 v6, {v(VT)}, 4, v6")
    for i in range(2):
        if i == 0: A.vm_wait("w0")
        else: A.vm_wait("w1")
        for up in range(2):
            for n in range(3):
                acc = ACC + 12*up + 4*n
                A(f"v_mfma_f32_16x16x32_bf16 {v(acc,4)}, {v(W+4*(6*i+3*up+n),4)}, {v(X+4*i,4)}, {'0' if i == 0 else v(acc,4)}")
        A.vmem(f"buffer_store_dwordx4 {v(X+4*i,4)}, v6, {s(SRD_WS,4)}, s22 offen offset:{2048*i}", "st")
    A(f"v_cmp_eq_u32 vcc, 0, {v(VU)}")
    for r in range(12): A(f"v_cndmask_b32 {v(ACC+r)}, {v(ACC+12+r)}, {v(ACC+r)}, vcc")
    A(f"v_lshl_add_u32 v6, {v(VU)}, 3, {v(VT)}\ns_lshl_b32 s22, {s(SW)}, 4\nv_add_u32 v6, s22, v6")
    A(f"v_mul_u32_u24 v6, 192, v6\nv_lshl_add_u32 v6, {v(VG)}, 4, v6")
    for n in range(3): A(f"ds_write_b128 v6, {v(ACC+4*n,4)} offset:{64*n}")
    A("s_waitcnt lgkmcnt(0)\ns_barrier")
    A("v_and_b32 v2, 7, v0\nv_lshrrev_b32 v3, 3, v0")
    A("v_mul_u32_u24 v4, 192, v2\nv_lshl_add_u32 v4, v3, 2, v4")
    for p in range(10): A(f"ds_read_b32 {v(16+p)}, v4 offset:{1536*p}")
    A("s_and_b32 s22, s2, 3\ns_lshl_b32 s22, s22, 3\nv_add_u32 v2, s22, v2")
    A("v_lshrrev_b32 v5, 3, v3\nv_lshlrev_b32 v5, 9, v5\nv_lshl_add_u32 v5, v2, 4, v5\nv_and_b32 v6, 7, v3\nv_lshl_add_u32 v5, v6, 1, v5")
    A("v_lshlrev_b32 v6, 3, v2\nv_lshl_add_u32 v6, v3, 1, v6\nv_add_u32 v6, 992, v6")
    A("v_cmp_gt_u32 vcc, 16, v3\nv_cndmask_b32 v5, v6, v5, vcc")
    A("v_lshrrev_b32 v6, 4, v2\nv_mul_u32_u24 v6, 672, v6")
    A("v_bfe_u32 v7, v2, 2, 1\nv_mul_u32_u24 v7, 336, v7\nv_add_u32 v6, v6, v7")
    A("v_bfe_u32 v7, v2, 3, 1\nv_lshl_add_u32 v6, v7, 3, v6")
    A("v_and_b32 v7, 3, v2\nv_lshl_add_u32 v6, v7, 1, v6")
    A("v_add_u32 v8, 1600, v6")
    A("v_lshl_add_u32 v6, v3, 4, v6\nv_add_u32 v6, 960, v6")
    A("v_cmp_gt_u32 vcc, 20, v3\nv_cndmask_b32 v5, v6, v5, vcc")
    A(f"s_lshr_b32 s22, s2, 2\ns_mul_i32 s22, s22, {KV_TILE}\ns_add_u32 s22, s22, {WS_KV}")
    A("s_waitcnt lgkmcnt(0)")
    A("v_add_f32 v16, v16, v17\nv_add_f32 v18, v18, v19\nv_add_f32 v20, v20, v21\nv_add_f32 v22, v22, v23\nv_add_f32 v24, v24, v25")
    A("v_add_f32 v16, v16, v18\nv_add_f32 v20, v20, v22\nv_add_f32 v16, v16, v24\nv_add_f32 v16, v16, v20")
    A("v_cvt_pk_bf16_f32 v16, v16, v16")
    A(f"buffer_store_short v16, v5, {s(SRD_WS,4)}, s22 offen")
    A("v_cmp_gt_u32 vcc, 8, v0")
    A("s_and_saveexec_b64 s[24:25], vcc")
    A(f"s_cbranch_execz {Lend}")
    A("v_mov_b32 v9, 0x3f80")
    A(f"buffer_store_short v9, v8, {s(SRD_WS,4)}, s22 offen")
    A.label(Lend)
    A("s_endpgm")
    return A, 144, 144
```

```python
from common import *
import g64, struct

NAME = "attn_kernel"
GRID = 256; BLOCK = 512
L_QM, L_QT, L_FLAG = 102400, 110592, 112640
LDS = L_FLAG + 128

def fbits(x): return "0x%08x" % struct.unpack("<I", struct.pack("<f", x))[0]

SW, STG, SNG, SKV, SCNT, SG, SPASS = 3, 20, 21, 34, 35, 36, 37
SRD_WS, SRD_KV = 8, 12
VL, VKM, VKT, VV, VT0, VT1, VT2 = 1, 2, 3, 4, 5, 6, 7
QM, QT = 8, 24
KM, KT, VF = (28, 44), (32, 48), (36, 52)
PB, OA, SB = 60, 76, 140
TMP = 204
NV = 216
POS = dict(m1=0, pv3=4, m2=11, pv0=17, m3=24, pv1=32, pv2=40)

def load_k(A, buf):
    A(f"buffer_load_dwordx4 {v(KM[buf],4)}, {v(VKM)}, {s(SRD_KV,4)}, {s(SKV)} offen")
    A(f"buffer_load_dwordx2 {v(KT[buf],2)}, {v(VKT)}, {s(SRD_KV,4)}, {s(SKV)} offen offset:1024")
def load_v(A, buf):
    A(f"buffer_load_dwordx4 {v(VF[buf],4)}, {v(VV)}, {s(SRD_KV,4)}, {s(SKV)} offen offset:1280")
    A(f"buffer_load_dwordx4 {v(VF[buf]+4,4)}, {v(VV)}, {s(SRD_KV,4)}, {s(SKV)} offen offset:1952")

def qk_ops(n):
    kt, p = n >> 1, n & 1
    S = SB + 32*p; b = kt & 1
    m1 = f"v_mfma_f32_32x32x16_bf16 {v(S,16)}, {v(KM[b],4)}, {v(QM+8*p,4)}, 0"
    m2 = f"v_mfma_f32_32x32x16_bf16 {v(S+16,16)}, {v(KM[b],4)}, {v(QM+8*p+4,4)}, 0"
    m3 = f"v_mfma_f32_32x32x4bf16_1k {v(S,32)}, {v(KT[b],2)}, {v(QT+2*p,2)}, {v(S,32)}"
    return m1, m2, m3

def pv_op(n, q, first):
    kt, p = n >> 1, n & 1
    o = OA + 16*(2*p + (q >> 1))
    c = "0" if (first and (q & 1) == 0) else v(o, 16)
    return f"v_mfma_f32_32x32x16_bf16 {v(o,16)}, {v(VF[kt&1]+4*(q&1),4)}, {v(PB+4*(q&1),4)}, {c}"

def step(A, n, head=True):
    kt, p = n >> 1, n & 1
    S = SB + 32*p
    E = lambda q, e: f"v_exp_f32 {v(S+8*q+e)}, {v(S+8*q+e)}"
    Cv = lambda SS, q, c: f"v_cvt_pk_bf16_f32 {v(PB+4*(q&1)+c)}, {v(SS+8*q+2*c)}, {v(SS+8*q+2*c+1)}"
    va = []
    for q in range(4):
        g = [E(q,0)]
        if q > 0: g.append(Cv(S, q-1, 3))
        elif head: g.append(Cv(SB + 32*(1-p), 3, 3))
        g += [E(q,1), E(q,2), Cv(S,q,0), E(q,3), E(q,4), Cv(S,q,1), E(q,5), E(q,6), Cv(S,q,2), E(q,7)]
        va += g
    m1, m2, m3 = qk_ops(n + 1)
    ins = {}
    def at(pos, *ops): ins.setdefault(pos, []).extend(ops)
    at(POS["m1"], *((["s_waitcnt vmcnt(4)"] if p == 1 else []) + [m1]))
    if head:
        at(POS["pv3"], pv_op(n - 1, 3, n - 1 < 2))
        if p == 0: at(POS["pv3"], ("V", (kt - 1) & 1))
    at(POS["m2"], m2)
    at(POS["pv0"], *((["s_waitcnt vmcnt(4)"] if p == 0 else []) + [pv_op(n, 0, n < 2)]))
    at(POS["m3"], m3)
    if p == 0: at(POS["m3"], ("K", kt & 1))
    at(POS["pv1"], pv_op(n, 1, n < 2)); at(POS["pv2"], pv_op(n, 2, n < 2))
    for i, op in enumerate(va):
        for x in ins.pop(i, []):
            if isinstance(x, tuple):
                if x[0] == "K": load_k(A, x[1])
                else:
                    load_v(A, x[1]); A(f"s_add_u32 {s(SKV)}, {s(SKV)}, {KV_TILE}")
            else: A(x)
        A(op)
    assert not ins

def tail(A, n):
    p = n & 1
    S = SB + 32*p
    A("s_nop 0")
    A(f"v_cvt_pk_bf16_f32 {v(PB+7)}, {v(S+30)}, {v(S+31)}")
    A(pv_op(n, 3, False))

def read_q(A):
    A(f"v_lshrrev_b32 {v(VT0)}, 2, v0\nv_and_b32 {v(VT0)}, 64, {v(VT0)}")
    A(f"v_lshlrev_b32 {v(VT1)}, 6, {v(VT0)}\nv_add_u32 {v(VT1)}, {v(VT1)}, {v(VKM)}")
    A(f"v_lshlrev_b32 {v(VT2)}, 4, {v(VT0)}\nv_lshl_add_u32 {v(VT2)}, {v(VL)}, 3, {v(VT2)}")
    A(f"v_add_u32 {v(VT1)}, {L_QM}, {v(VT1)}\nv_add_u32 {v(VT2)}, {L_QT}, {v(VT2)}")
    for h in range(4): A(f"ds_read_b128 {v(QM+4*h,4)}, {v(VT1)} offset:{1024*h}")
    for p in range(2): A(f"ds_read_b64 {v(QT+2*p,2)}, {v(VT2)} offset:{512*p}")

def kv_start(A):
    A(f"s_and_b32 {s(SKV)}, {s(SW)}, 3\ns_mul_i32 {s(SKV)}, {s(SKV)}, {16*KV_TILE}")

def gen():
    A = Asm()
    A(f"s_cmp_ge_u32 s2, {GRID}")
    A("s_cbranch_scc1 Lk2_end")
    load_ptr(A, "ws", 4)
    wave_id(A, SW, 1)
    A(f"v_and_b32 {v(VL)}, 63, v0\nv_lshlrev_b32 {v(VKM)}, 4, {v(VL)}")
    g64.tile_ids(A, STG, SNG)
    A(f"v_and_b32 {v(VT0)}, 31, {v(VL)}\nv_lshlrev_b32 {v(VKT)}, 3, {v(VT0)}")
    A(f"v_min_u32 {v(VT0)}, 20, {v(VT0)}\nv_lshrrev_b32 {v(VT1)}, 5, {v(VL)}\nv_mul_u32_u24 {v(VT1)}, 21, {v(VT1)}")
    A(f"v_add_lshl_u32 {v(VV)}, {v(VT0)}, {v(VT1)}, 4")
    A("s_waitcnt lgkmcnt(0)")
    make_srd(A, SRD_WS, 4, WS_END); make_srd(A, SRD_KV, 4, 64*KV_TILE, add=WS_KV)
    A(f"s_mov_b32 {s(SPASS)}, 0")
    A(f"s_cmp_lt_u32 {s(SW)}, 4")
    A("s_cbranch_scc1 Lk2_comp")
    A(f"s_sub_u32 s22, {s(SW)}, 4\ns_mul_i32 s23, {s(SNG)}, 102400\ns_add_u32 s23, s23, {WS_WQ}")
    def init_flag(A):
        A(f"v_mov_b32 {v(VT0)}, {L_FLAG}\nv_mov_b32 {v(VT1)}, 0\nds_write_b32 {v(VT0)}, {v(VT1)}\ns_waitcnt lgkmcnt(0)")
    g64.loader(A, 20, None, SRD_WS, 23, 22, VKM, 24, after_first=init_flag)
    A("s_branch Lk2_qdone")
    A.label("Lk2_comp")
    A(f"s_lshl_b32 s22, {s(STG)}, 2\ns_add_u32 s22, s22, {s(SW)}\ns_mul_i32 s23, s22, 20480\ns_add_u32 s23, s23, {WS_H}")
    QACC, QADR = 180, 200
    def qaddr(A):
        A(f"s_and_b32 s24, {s(SW)}, 1\ns_lshl_b32 s24, s24, 4\nv_and_b32 {v(8)}, 15, {v(VL)}\nv_add_u32 {v(8)}, s24, {v(8)}")
        A(f"v_lshrrev_b32 {v(9)}, 4, {v(VL)}")
        A(f"s_lshr_b32 s24, {s(SW)}, 1\ns_lshl_b32 s25, s24, 12\ns_add_u32 s25, s25, {L_QM}\ns_lshl_b32 s24, s24, 10\ns_add_u32 s24, s24, {L_QT}")
        for i in range(5):
            A(f"v_add_u32 {v(10)}, {4*i}, {v(9)}\nv_mul_u32_u24 {v(11)}, 13, {v(10)}\nv_lshrrev_b32 {v(11)}, 6, {v(11)}")
            A(f"v_mul_u32_u24 {v(12)}, 5, {v(11)}\nv_sub_u32 {v(10)}, {v(10)}, {v(12)}")
            A(f"v_lshlrev_b32 {v(12)}, 10, {v(11)}\nv_lshrrev_b32 {v(13)}, 1, {v(10)}\nv_lshl_add_u32 {v(12)}, {v(13)}, 9, {v(12)}")
            A(f"v_lshl_add_u32 {v(12)}, {v(8)}, 4, {v(12)}\nv_and_b32 {v(13)}, 1, {v(10)}\nv_lshl_add_u32 {v(12)}, {v(13)}, 3, {v(12)}")
            A(f"v_add_u32 {v(12)}, s25, {v(12)}")
            A(f"v_lshlrev_b32 {v(13)}, 8, {v(11)}\nv_lshl_add_u32 {v(13)}, {v(8)}, 3, {v(13)}\nv_add_u32 {v(13)}, s24, {v(13)}")
            A(f"v_cmp_eq_u32 vcc, 4, {v(10)}\nv_cndmask_b32 {v(QADR+i)}, {v(12)}, {v(13)}, vcc")
    g64.compute(A, 20, None, SRD_WS, 23, VKM, 60, 20, 140, QACC, VT0, after_b=qaddr)
    A(f"s_mov_b32 s24, {fbits(20**-0.5 * 1.4426950408889634)}")
    for r in range(20): A(f"v_mul_f32 {v(QACC+r)}, s24, {v(QACC+r)}")
    for i in range(5):
        A(f"v_cvt_pk_bf16_f32 {v(140+2*i)}, {v(QACC+4*i)}, {v(QACC+4*i+1)}\nv_cvt_pk_bf16_f32 {v(141+2*i)}, {v(QACC+4*i+2)}, {v(QACC+4*i+3)}")
        A(f"ds_write_b64 {v(QADR+i)}, {v(140+2*i,2)}")
    A.label("Lk2_qdone")
    kv_start(A)
    load_k(A, 0); load_v(A, 0)
    A(f"s_add_u32 {s(SKV)}, {s(SKV)}, {KV_TILE}")
    load_k(A, 1); load_v(A, 1)
    A(f"s_add_u32 {s(SKV)}, {s(SKV)}, {KV_TILE}")
    A("s_waitcnt lgkmcnt(0)\ns_barrier")
    read_q(A)
    A("s_waitcnt vmcnt(6) lgkmcnt(0)")
    for m in qk_ops(0): A(m)
    step(A, 0, head=False)
    for n in (1, 2, 3): step(A, n)
    A(f"s_mov_b32 {s(SCNT)}, 7")
    A(".p2align 3")
    A.label("Lk2_loop")
    for n in (4, 5, 6, 7): step(A, n)
    A(f"s_sub_u32 {s(SCNT)}, {s(SCNT)}, 1\ns_cmp_lg_u32 {s(SCNT)}, 0\ns_cbranch_scc1 Lk2_loop")
    tail(A, 7)
    A.label("Lk2_red")
    A(f"s_and_b32 s24, {s(SW)}, 3\ns_lshl_b32 s24, s24, 1\ns_lshr_b32 s25, {s(SW)}, 2\ns_add_u32 s24, s24, s25\ns_mul_i32 s24, s24, 12288")
    A(f"v_add_u32 {v(VT0)}, s24, {v(VKM)}")
    for h in range(4):
        for q in range(3): A(f"ds_write_b128 {v(VT0)}, {v(OA+16*h+4*q,4)} offset:{3072*h+1024*q}")
    A(f"v_lshrrev_b32 {v(VT1)}, 5, {v(VL)}\nv_mul_u32_u24 {v(VT1)}, 12288, {v(VT1)}\nv_lshl_add_u32 {v(VT1)}, {v(VKT)}, 1, {v(VT1)}")
    A(f"v_lshrrev_b32 {v(VT2)}, 4, {v(VL)}\nv_mul_u32_u24 {v(VT2)}, 20480, {v(VT2)}\nv_and_b32 {v(TMP)}, 15, {v(VL)}\nv_lshl_add_u32 {v(VT2)}, {v(TMP)}, 4, {v(VT2)}")
    A(f"s_mov_b32 {s(SG)}, {s(SW)}")
    A(f"s_mov_b32 s38, 0x1f800000\nv_mov_b32 {v(TMP+1)}, 0x5f800000")
    A("s_waitcnt vmcnt(0) lgkmcnt(0)\ns_barrier")
    A.label("Lk2_item")
    R0, LR = 60, 100
    for e in range(2):
        A(f"s_lshl_b32 s24, {s(SG)}, 1\ns_add_u32 s24, s24, {e}\ns_mul_i32 s25, s24, 13\ns_lshr_b32 s25, s25, 6")
        A("s_mul_i32 s26, s25, 5\ns_sub_u32 s26, s24, s26\ns_mul_i32 s25, s25, 3072\ns_lshl_b32 s26, s26, 9\ns_add_u32 s26, s26, s25")
        A(f"v_add_u32 {v(TMP+2)}, s26, {v(VT1)}\nv_add_u32 {v(TMP+3)}, 49152, {v(TMP+2)}")
        A(f"v_add_u32 {v(TMP+4)}, s25, {v(VT1)}\nv_add_u32 {v(TMP+5)}, 49152, {v(TMP+4)}")
        for kq in range(4):
            A(f"ds_read_b128 {v(R0+16*e+4*kq,4)}, {v(TMP+2+(kq>>1))} offset:{24576*(kq&1)}")
            A(f"ds_read_b32 {v(LR+4*e+kq)}, {v(TMP+4+(kq>>1))} offset:{24576*(kq&1)+2560}")
    A(f"s_mul_i32 s24, {s(STG)}, 81920\ns_mul_i32 s25, {s(SNG)}, 10\ns_add_u32 s25, s25, {s(SG)}\ns_lshl_b32 s25, s25, 8\ns_add_u32 s24, s24, s25\ns_add_u32 s24, s24, {WS_O}")
    for e in range(2):
        A(f"s_waitcnt lgkmcnt({8*(1-e)})")
        L = LR + 4*e; R = R0 + 16*e
        A(f"v_add_f32 {v(L)}, {v(L)}, {v(L+1)}\nv_add_f32 {v(L+2)}, {v(L+2)}, {v(L+3)}\nv_add_f32 {v(L)}, {v(L)}, {v(L+2)}")
        A(f"v_rcp_f32 {v(L+1)}, {v(L)}")
        A(f"v_med3_f32 {v(L+2)}, {v(L)}, s38, {v(TMP+1)}")
        A(f"v_cmp_neq_f32 {'vcc' if e == 0 else 's[26:27]'}, {v(L+2)}, {v(L)}")
        for r in range(4):
            A(f"v_add_f32 {v(R+r)}, {v(R+r)}, {v(R+4+r)}\nv_add_f32 {v(R+8+r)}, {v(R+8+r)}, {v(R+12+r)}")
        for r in range(4):
            A(f"v_add_f32 {v(R+r)}, {v(R+r)}, {v(R+8+r)}")
        for r in range(4):
            A(f"v_mul_f32 {v(R+r)}, {v(R+r)}, {v(L+1)}")
        A(f"v_cvt_pk_bf16_f32 {v(108+2*e)}, {v(R)}, {v(R+1)}\nv_cvt_pk_bf16_f32 {v(109+2*e)}, {v(R+2)}, {v(R+3)}")
    A(f"buffer_store_dwordx4 v[108:111], {v(VT2)}, {s(SRD_WS,4)}, s24 offen")
    A("s_or_b64 vcc, vcc, s[26:27]")
    A("s_cbranch_vccz Lk2_ok")
    A(f"v_mov_b32 {v(TMP+2)}, {L_FLAG}\nv_mov_b32 {v(TMP+3)}, 1\nds_write_b32 {v(TMP+2)}, {v(TMP+3)}")
    A.label("Lk2_ok")
    A(f"s_add_u32 {s(SG)}, {s(SG)}, 8\ns_cmp_lt_u32 {s(SG)}, 10\ns_cbranch_scc1 Lk2_item")
    A(f"s_cmp_lg_u32 {s(SPASS)}, 0\ns_cbranch_scc1 Lk2_end")
    A("s_waitcnt lgkmcnt(0)\ns_barrier")
    A(f"v_mov_b32 {v(TMP+2)}, {L_FLAG}\nds_read_b32 {v(TMP+3)}, {v(TMP+2)}\ns_waitcnt lgkmcnt(0)")
    A(f"v_readfirstlane_b32 s24, {v(TMP+3)}\ns_cmp_eq_u32 s24, 0\ns_cbranch_scc1 Lk2_end")
    slow_path(A)
    A.label("Lk2_end")
    A("s_endpgm")
    return A, NV, NV

def slow_path(A):
    A(f"s_mov_b32 {s(SPASS)}, 1")
    A("s_waitcnt vmcnt(0)")
    K8 = 204
    MX = 212
    A(f"v_lshrrev_b32 {v(VT0)}, 2, v0\nv_and_b32 {v(VT0)}, 64, {v(VT0)}\nv_lshlrev_b32 {v(VT0)}, 4, {v(VT0)}")
    A(f"v_add_u32 {v(VT0)}, {v(VT0)}, {v(VKT)}\nv_add_u32 {v(VT0)}, {L_QT}, {v(VT0)}")
    for h in range(4): A(f"ds_read_b64 {v(K8+2*h,2)}, {v(VT0)} offset:{256*h}")
    A(f"v_cmp_gt_u32 s[40:41], 32, {v(VL)}")
    A("s_waitcnt lgkmcnt(0)")
    for r in range(8): A(f"v_cndmask_b32 {v(K8+r)}, 0, {v(K8+r)}, s[40:41]")
    def ktile(A, with_v):
        load_k(A, 0)
        if with_v: load_v(A, 0)
        A(f"s_add_u32 {s(SKV)}, {s(SKV)}, {KV_TILE}")
        A(f"v_mov_b32 {v(VT1)}, 0x3f803f80")
        A("s_waitcnt vmcnt(0)")
        A(f"v_cndmask_b32 {v(KT[0])}, {v(VT1)}, {v(KT[0])}, s[40:41]\nv_cndmask_b32 {v(KT[0]+1)}, 0, {v(KT[0]+1)}, s[40:41]")
    def scores(A, h):
        A(f"v_mfma_f32_32x32x16_bf16 {v(SB,16)}, {v(KM[0],4)}, {v(QM+4*h,4)}, 0")
        A(f"v_mfma_f32_32x32x8bf16_1k {v(SB,16)}, {v(KT[0],2)}, {v(K8+2*h,2)}, {v(SB,16)}")
    for h in range(4): A(f"v_mov_b32 {v(MX+h)}, 0xff800000")
    kv_start(A)
    A(f"s_mov_b32 {s(SCNT)}, 16")
    A.label("Lk2_max")
    ktile(A, False)
    for h in range(4):
        scores(A, h)
        for r in range(0, 16, 2): A(f"v_max3_f32 {v(MX+h)}, {v(SB+r)}, {v(SB+r+1)}, {v(MX+h)}")
    A(f"s_sub_u32 {s(SCNT)}, {s(SCNT)}, 1\ns_cmp_lg_u32 {s(SCNT)}, 0\ns_cbranch_scc1 Lk2_max")
    A(f"v_lshrrev_b32 {v(VT0)}, 2, v0\nv_and_b32 {v(VT0)}, 64, {v(VT0)}\nv_lshlrev_b32 {v(VT0)}, 6, {v(VT0)}")
    A(f"v_lshl_add_u32 {v(VT0)}, {v(VKT)}, 2, {v(VT0)}")
    A(f"v_lshrrev_b32 {v(VT1)}, 5, {v(VL)}\ns_and_b32 s24, {s(SW)}, 3\ns_lshl_b32 s24, s24, 3\nv_lshl_add_u32 {v(VT1)}, {v(VT1)}, 2, s24\nv_add_u32 {v(VT1)}, {v(VT0)}, {v(VT1)}")
    for h in range(4): A(f"ds_write_b32 {v(VT1)}, {v(MX+h)} offset:{1024*h}")
    A("s_waitcnt lgkmcnt(0)\ns_barrier")
    for h in range(4):
        A(f"ds_read_b128 {v(SB,4)}, {v(VT0)} offset:{1024*h}\nds_read_b128 {v(SB+4,4)}, {v(VT0)} offset:{1024*h+16}\ns_waitcnt lgkmcnt(0)")
        A(f"v_max3_f32 {v(SB)}, {v(SB)}, {v(SB+1)}, {v(SB+2)}\nv_max3_f32 {v(SB)}, {v(SB)}, {v(SB+3)}, {v(SB+4)}")
        A(f"v_max3_f32 {v(SB)}, {v(SB)}, {v(SB+5)}, {v(SB+6)}\nv_max_f32 {v(SB)}, {v(SB)}, {v(SB+7)}")
        A(f"v_sub_f32 {v(SB)}, 0, {v(SB)}\nv_cvt_pk_bf16_f32 {v(SB+1)}, {v(SB)}, {v(SB)}\nv_and_b32 {v(SB+1)}, 0xffff0000, {v(SB+1)}")
        A(f"v_sub_f32 {v(SB+2)}, {v(SB)}, {v(SB+1)}\nv_cvt_pk_bf16_f32 {v(SB+1)}, {v(SB+1)}, {v(SB+2)}")
        A(f"v_cndmask_b32 {v(K8+2*h)}, {v(SB+1)}, {v(K8+2*h)}, s[40:41]")
    for r in range(64): A(f"v_mov_b32 {v(OA+r)}, 0")
    A("s_barrier")
    kv_start(A)
    A(f"s_mov_b32 {s(SCNT)}, 16")
    A.label("Lk2_slow")
    ktile(A, True)
    for h in range(4):
        scores(A, h)
        for r in range(16): A(f"v_exp_f32 {v(SB+r)}, {v(SB+r)}")
        for r in range(8): A(f"v_cvt_pk_bf16_f32 {v(PB+r)}, {v(SB+2*r)}, {v(SB+2*r+1)}")
        for m in range(2):
            A(f"v_mfma_f32_32x32x16_bf16 {v(OA+16*h,16)}, {v(VF[0]+4*m,4)}, {v(PB+4*m,4)}, {v(OA+16*h,16)}")
    A(f"s_sub_u32 {s(SCNT)}, {s(SCNT)}, 1\ns_cmp_lg_u32 {s(SCNT)}, 0\ns_cbranch_scc1 Lk2_slow")
    A("s_branch Lk2_red")
```

```python
from common import *
import g64

BLOCK = 512
GRID = 256

def gen(which):
    k3 = which == 3
    A = Asm()
    KS = 20 if k3 else 48
    R = None if k3 else 7
    NB = 20 if k3 else 32
    P = f"Lk{which}"
    SW, STG, SNG = 3, 20, 21
    SRD_WS, SRD_IO, SRD_OUT = 8, 12, 16
    VL, VL16, VG, VT = 1, 2, 3, 4
    VLD, VA, VACC, VX, VGATE, VCB, VB = 5, 8, 48, 68, 78, 98, 118
    A(f"s_cmp_ge_u32 s2, {GRID}")
    A(f"s_cbranch_scc1 {P}_end")
    load_ptr(A, "ws", 4); load_ptr(A, "x" if k3 else "out", 6)
    wave_id(A, SW, 1)
    A(f"v_and_b32 {v(VL)}, 63, v0\nv_lshlrev_b32 {v(VL16)}, 4, {v(VL)}")
    g64.tile_ids(A, STG, SNG)
    A("s_waitcnt lgkmcnt(0)")
    make_srd(A, SRD_WS, 4, WS_END); make_srd(A, SRD_IO, 6, NBYTES["x"])
    A(f"s_cmp_lt_u32 {s(SW)}, 4")
    A(f"s_cbranch_scc1 {P}_comp")
    A(f"s_sub_u32 s22, {s(SW)}, 4\ns_mul_i32 s23, {s(SNG)}, {KS*5120}\ns_add_u32 s23, s23, {WS_WO if k3 else WS_WD}")
    g64.loader(A, KS, R, SRD_WS, 23, 22, VL16, 24)
    A("s_endpgm")
    A.label(f"{P}_comp")
    A(f"s_lshl_b32 s22, {s(STG)}, 2\ns_add_u32 s22, s22, {s(SW)}")
    A(f"s_mul_i32 s23, s22, {KS*1024}\ns_add_u32 s23, s23, {WS_O if k3 else WS_HM}")
    A(f"v_lshrrev_b32 {v(VG)}, 4, {v(VL)}\nv_and_b32 {v(VT)}, 15, {v(VL)}")
    VNAT, VD, VM = 246, 247, 248
    A(f"v_mul_u32_u24 {v(VNAT)}, 1280, {v(VT)}\nv_lshl_add_u32 {v(VNAT)}, {v(VG)}, 3, {v(VNAT)}")
    A(f"v_lshlrev_b32 {v(VD)}, 3, {v(VL)}\nv_lshlrev_b32 {v(VM)}, 4, {v(VG)}")
    A(f"s_mul_i32 s24, s22, 20480\ns_mul_i32 s25, {s(SNG)}, 160\ns_add_u32 s24, s24, s25")
    A(f"s_lshl_b32 s26, s22, 3\ns_add_u32 s26, s26, {s(SNG)}\ns_mul_i32 s26, s26, 2560\ns_add_u32 s26, s26, {WS_X1}")
    A(f"s_mul_i32 s27, {s(SNG)}, 320\ns_add_u32 s28, s27, {WS_MOD + 4*2560}\ns_add_u32 s27, s27, {WS_MOD + (2 if k3 else 5)*2560}")
    def after_b(A):
        for i in range(5):
            if k3: A.vmem(f"buffer_load_dwordx2 {v(VX+2*i,2)}, {v(VNAT)}, {s(SRD_IO,4)}, s24 offen offset:{32*i}", "e")
            else:  A.vmem(f"buffer_load_dwordx2 {v(VX+2*i,2)}, {v(VD)}, {s(SRD_WS,4)}, s26 offen offset:{512*i}", "e")
            A.vmem(f"buffer_load_dwordx4 {v(VGATE+4*i,4)}, {v(VM)}, {s(SRD_WS,4)}, s27 offen offset:{64*i}", "e")
            if k3: A.vmem(f"buffer_load_dwordx4 {v(VCB+4*i,4)}, {v(VM)}, {s(SRD_WS,4)}, s28 offen offset:{64*i}", "e")
    g64.compute(A, KS, R, SRD_WS, 23, VL16, VB, NB, VA, VACC, VLD, after_b=after_b)
    A.vm_wait("e")
    XF = VA
    for i in range(5):
        for q in range(2):
            unpack_lo(A, XF+4*i+2*q, VX+2*i+q); unpack_hi(A, XF+4*i+2*q+1, VX+2*i+q)
    for r in range(20): A(f"v_fma_f32 {v(XF+r)}, {v(VACC+r)}, {v(VGATE+r)}, {v(XF+r)}")
    for r in range(10): A(f"v_cvt_pk_bf16_f32 {v(VX+r)}, {v(XF+2*r)}, {v(XF+2*r+1)}")
    if not k3:
        for i in range(5):
            A(f"buffer_store_dwordx2 {v(VX+2*i,2)}, {v(VNAT)}, {s(SRD_IO,4)}, s24 offen offset:{32*i}")
    else:
        for i in range(5):
            A(f"buffer_store_dwordx2 {v(VX+2*i,2)}, {v(VD)}, {s(SRD_WS,4)}, s26 offen offset:{512*i}")
        for r in range(10):
            unpack_lo(A, XF+2*r, VX+r); unpack_hi(A, XF+2*r+1, VX+r)
        for r in range(20): A(f"v_mul_f32 {v(VACC+r)}, {v(XF+r)}, {v(VCB+r)}")
        Y = VGATE
        for r in range(10): A(f"v_cvt_pk_bf16_f32 {v(Y+r)}, {v(VACC+2*r)}, {v(VACC+2*r+1)}")
        A(f"s_lshr_b32 s29, s22, 1\ns_mul_i32 s29, s29, 40960\ns_mul_i32 s30, {s(SNG)}, 5120\ns_add_u32 s29, s29, s30")
        A(f"s_and_b32 s30, s22, 1\ns_lshl_b32 s30, s30, 8\ns_add_u32 s29, s29, s30\ns_add_u32 s29, s29, {WS_Y}\ns_add_u32 s30, s29, 4096")
        A(f"v_lshrrev_b32 {v(VM)}, 1, {v(VG)}\nv_lshlrev_b32 {v(VM)}, 9, {v(VM)}\nv_lshl_add_u32 {v(VM)}, {v(VT)}, 4, {v(VM)}")
        A(f"v_and_b32 {v(VNAT)}, 1, {v(VG)}\nv_lshl_add_u32 {v(VM)}, {v(VNAT)}, 3, {v(VM)}")
        for i in range(5):
            A(f"buffer_store_dwordx2 {v(Y+2*i,2)}, {v(VM)}, {s(SRD_WS,4)}, {'s29' if i < 4 else 's30'} offen offset:{1024*(i%4)}")
        S0, S1, T0, T1 = VCB, VCB+1, VCB+2, VCB+3
        A(f"v_add_f32 {v(S0)}, {v(XF)}, {v(XF+1)}\nv_mul_f32 {v(S1)}, {v(XF)}, {v(XF)}\nv_fmac_f32 {v(S1)}, {v(XF+1)}, {v(XF+1)}")
        for r in range(2, 20):
            A(f"v_add_f32 {v(S0)}, {v(S0)}, {v(XF+r)}\nv_fmac_f32 {v(S1)}, {v(XF+r)}, {v(XF+r)}")
        sum_halves16(A, S0, T0); sum_halves16(A, S1, T1)
        sum_halves32(A, S0, T0); sum_halves32(A, S1, T1)
        A(f"s_lshl_b32 s29, s22, 10\ns_lshl_b32 s30, {s(SNG)}, 3\ns_add_u32 s29, s29, s30\ns_add_u32 s29, s29, {WS_STATS}")
        A(f"v_lshlrev_b32 {v(VM)}, 6, {v(VT)}")
        A(f"v_cmp_gt_u32 vcc, 16, {v(VL)}")
        A("s_and_saveexec_b64 s[32:33], vcc")
        A(f"buffer_store_dwordx2 {v(S0,2)}, {v(VM)}, {s(SRD_WS,4)}, s29 offen")
    A.label(f"{P}_end")
    A("s_endpgm")
    return A, 256, 256

NAMES = {3: "oproj_kernel", 5: "down_kernel"}
LDSB = {3: 102400, 5: 143360}
```

```python
from common import *
import g64, struct

NAME = "gateup_kernel"
GRID = 256; BLOCK = 512
RING0 = 6144
LDS = RING0 + 7*20480

def fbits(x): return "0x%08x" % struct.unpack("<I", struct.pack("<f", x))[0]
C1 = -2.0 * 1.4426950408889634 * 0.7978845608028654
C2 = C1 * 0.044715

def gen():
    A = Asm()
    SW, STB, SFB = 3, 20, 21
    SRD_WS = 8
    VL16, VB1, VB2, VST = 1, 2, 3, 0
    XB, K1, K2, IR2 = 4, 8, 9, 10
    T = 11
    VA, ACC = 16, 32
    A(f"s_cmp_ge_u32 s2, {GRID}")
    A("s_cbranch_scc1 Lk4_end")
    load_ptr(A, "ws", 4)
    wave_id(A, SW, 1)
    A(f"v_and_b32 v0, 63, v0\nv_lshlrev_b32 {v(VL16)}, 4, v0")
    A(f"s_and_b32 {s(STB)}, s2, 7\ns_lshl_b32 {s(STB)}, {s(STB)}, 1\ns_lshr_b32 {s(SFB)}, s2, 7\ns_add_u32 {s(STB)}, {s(STB)}, {s(SFB)}")
    A(f"s_bfe_u32 {s(SFB)}, s2, 0x40003")
    A("s_waitcnt lgkmcnt(0)")
    make_srd(A, SRD_WS, 4, WS_END)
    A(f"s_cmp_lt_u32 {s(SW)}, 4")
    A("s_cbranch_scc1 Lk4_comp")
    A(f"s_sub_u32 s22, {s(SW)}, 4\ns_mul_i32 s23, {s(SFB)}, {GU_BLOCK}\ns_add_u32 s28, s23, {WS_WGU}\ns_add_u32 s23, s28, {RING0}")
    def extra(A):
        A("s_min_u32 s29, s22, 2\ns_lshl_b32 s29, s29, 11\ns_add_u32 s28, s28, s29")
        dma(A, VL16, SRD_WS, "s28", 29, 0, "c0")
        dma(A, VL16, SRD_WS, "s28", 29, 0, "c0", imm=1024, set_m0=False)
    g64.loader(A, 48, 7, SRD_WS, 23, 22, VL16, 24, lds0=RING0, before=extra)
    A("s_endpgm")
    A.label("Lk4_comp")
    A.vm_reset()
    A(f"s_lshl_b32 s22, {s(STB)}, 2\ns_add_u32 s22, s22, {s(SW)}")
    ST = ACC + 32
    A(f"v_and_b32 {v(T)}, 31, v0\nv_lshlrev_b32 {v(T+1)}, 6, {v(T)}")
    A(f"s_lshl_b32 s23, s22, 11\ns_add_u32 s23, s23, {WS_STATS}")
    for q in range(4):
        A.vmem(f"buffer_load_dwordx4 {v(ST+4*q,4)}, {v(T+1)}, {s(SRD_WS,4)}, s23 offen offset:{16*q}", "st")
    A(f"s_mul_i32 s23, s22, 40960\ns_add_u32 s23, s23, {WS_Y}")
    for k in range(40):
        if k and k % 4 == 0: A("s_add_u32 s23, s23, 4096")
        A.vmem(f"buffer_load_dwordx4 {a(4*k,4)}, {v(VL16)}, {s(SRD_WS,4)}, s23 offen offset:{(k%4)*1024}", f"x{k}")
    A(f"v_add_u32 {v(VB1)}, 61440, {v(VL16)}\nv_add_u32 {v(VB2)}, 122880, {v(VL16)}")
    A(f"v_cmp_gt_u32 s[30:31], 32, v0")
    A(f"v_lshrrev_b32 {v(T+1)}, 4, {v(T)}\nv_mul_u32_u24 {v(T+1)}, 49152, {v(T+1)}\nv_and_b32 {v(T)}, 15, {v(T)}\nv_lshl_add_u32 {v(T+1)}, {v(T)}, 4, {v(T+1)}")
    A(f"v_lshrrev_b32 {v(T)}, 5, v0\nv_lshl_add_u32 {v(VST)}, {v(T)}, 8, {v(T+1)}")
    A(f"s_mul_i32 s24, s22, 98304\ns_mul_i32 s25, {s(SFB)}, 3072\ns_add_u32 s24, s24, s25\ns_add_u32 s24, s24, {WS_HM}")
    A.vm_wait("st")
    for q in range(2):
        A(f"v_add_f32 {v(ST+q)}, {v(ST+q)}, {v(ST+2+q)}")
        for z in range(1, 4):
            A(f"v_add_f32 {v(ST+4*z+q)}, {v(ST+4*z+q)}, {v(ST+4*z+2+q)}")
        A(f"v_add_f32 {v(ST+q)}, {v(ST+q)}, {v(ST+4+q)}\nv_add_f32 {v(ST+8+q)}, {v(ST+8+q)}, {v(ST+12+q)}\nv_add_f32 {v(ST+q)}, {v(ST+q)}, {v(ST+8+q)}")
    MU, VAR, RR, RHO = ST, ST+1, ST+2, ST+3
    A(f"v_mul_f32 {v(MU)}, 0xbacccccd, {v(MU)}")
    A(f"v_mul_f32 {v(VAR)}, 0x3acccccd, {v(VAR)}")
    A(f"v_fma_f32 {v(VAR)}, -{v(MU)}, {v(MU)}, {v(VAR)}\nv_max_f32 {v(VAR)}, 0, {v(VAR)}\nv_add_f32 {v(IR2)}, 0x3727c5ac, {v(VAR)}")
    A(f"v_rsq_f32 {v(RR)}, {v(IR2)}\nv_sqrt_f32 {v(RHO)}, {v(IR2)}")
    A(f"v_mul_f32 {v(K1)}, {fbits(C1)}, {v(RR)}\nv_mul_f32 {v(K2)}, {v(RR)}, {v(RR)}\nv_mul_f32 {v(K2)}, {v(K2)}, {v(RR)}\nv_mul_f32 {v(K2)}, {fbits(C2)}, {v(K2)}")
    A(f"v_cvt_pk_bf16_f32 {v(ST+4)}, {v(MU)}, {v(RHO)}")
    A(f"v_lshlrev_b32 {v(ST+5)}, 16, {v(ST+4)}\nv_and_b32 {v(ST+6)}, 0xffff0000, {v(ST+4)}")
    A(f"v_sub_f32 {v(ST+5)}, {v(MU)}, {v(ST+5)}\nv_sub_f32 {v(ST+6)}, {v(RHO)}, {v(ST+6)}")
    A(f"v_cvt_pk_bf16_f32 {v(XB)}, {v(MU)}, {v(ST+5)}")
    A(f"v_cvt_pk_bf16_f32 {v(XB+2)}, {v(ST+6)}, {v(RHO)}")
    A(f"v_cndmask_b32 {v(XB)}, 0, {v(XB)}, s[30:31]\nv_cndmask_b32 {v(XB+1)}, 0, {v(ST+4)}, s[30:31]\nv_cndmask_b32 {v(XB+2)}, 0, {v(XB+2)}, s[30:31]\nv_mov_b32 {v(XB+3)}, 0")

    seq = [(p, k) for p in range(3) for k in range(41)]
    def lds_off(p, k, i):
        if k == 40: return (2*p + i) * 1024
        gs = 40*p + k
        return RING0 + ((gs // 10) % 7) * 20480 + ((gs % 10)*2 + i) * 1024
    def aread(n):
        p, k = seq[n]
        out = []
        for i in range(2):
            o = lds_off(p, k, i)
            out.append(f"ds_read_b128 {v(VA+8*(n&1)+4*i,4)}, {v((VL16, VB1, VB2)[o//61440])} offset:{o%61440}")
        return out
    def epilogue(p):
        ops = []
        for i in range(2):
            acc = ACC + 32*(p & 1) + 16*i
            for e0 in range(0, 8, 2):
                E = (e0, e0+1)
                for j, e in enumerate(E): ops.append(f"v_mul_f32 {v(T+j)}, {v(acc+e)}, {v(acc+e)}")
                for j, e in enumerate(E): ops.append(f"v_fma_f32 {v(T+j)}, {v(T+j)}, {v(K2)}, {v(K1)}")
                for j, e in enumerate(E): ops.append(f"v_mul_f32 {v(T+j)}, {v(T+j)}, {v(acc+e)}")
                for j, e in enumerate(E): ops.append(f"v_exp_f32 {v(T+j)}, {v(T+j)}")
                ops.append(f"v_mul_f32 {v(acc+8+e0)}, {v(acc+8+e0)}, {v(acc+e0)}")
                for j, e in enumerate(E): ops.append(f"v_fma_f32 {v(T+j)}, {v(T+j)}, {v(IR2)}, {v(IR2)}")
                for j, e in enumerate(E): ops.append(f"v_rcp_f32 {v(T+j)}, {v(T+j)}")
                ops.append(f"v_mul_f32 {v(acc+9+e0)}, {v(acc+9+e0)}, {v(acc+1+e0)}")
                for j, e in enumerate(E): ops.append(f"v_mul_f32 {v(acc+8+e)}, {v(acc+8+e)}, {v(T+j)}")
                ops.append(f"v_cvt_pk_bf16_f32 {v(acc+e0//2)}, {v(acc+8+e0)}, {v(acc+9+e0)}")
            ops.append(("store", f"buffer_store_dwordx4 {v(acc,4)}, {v(VST)}, {s(SRD_WS,4)}, s24 offen offset:{1024*p+512*i}"))
        return ops
    def emit(op):
        if isinstance(op, tuple): A.vmem(op[1], "out")
        else: A(op)
    A("s_barrier")
    for r in aread(0): A(r)
    pend = []
    for n, (p, k) in enumerate(seq):
        if k == 0 and p > 0: pend = epilogue(p - 1)
        boundary = False
        if n + 1 < len(seq):
            p2, k2 = seq[n+1]
            if k2 != 40 and (40*p2 + k2) % 10 == 0:
                A("s_waitcnt lgkmcnt(0)\ns_barrier"); boundary = True
            rd = aread(n + 1)
        else: rd = []
        acc = ACC + 32*(p & 1)
        for i in range(2):
            if rd: A(rd[i])
            lg = "" if boundary else f"lgkmcnt({(i+1 if rd else 0) + 1 - i})"
            if i == 0 and p == 0 and k < 40: A.vm_wait(f"x{k}", lg)
            elif lg: A(f"s_waitcnt {lg}")
            b = a(4*k, 4) if k < 40 else v(XB, 4)
            A(f"v_mfma_f32_32x32x16_bf16 {v(acc+16*i,16)}, {v(VA+8*(n&1)+4*i,4)}, {b}, {'0' if k == 0 else v(acc+16*i,16)}")
            if k >= 3:
                for _ in range(2):
                    if pend: emit(pend.pop(0))
        assert not (k == 40 and pend)
    for op in epilogue(2): emit(op)
    A.label("Lk4_end")
    A("s_endpgm")
    return A, 256, 96
```

```python
from common import *
from k0 import transpose_f16

NAME = "prepw_kernel"
GRID = 164; BLOCK = 256; LDS = 40960 + 1024

def gen():
    A = Asm()
    Lend, Lgu, Lwd = "Lpw_end", "Lpw_gu", "Lpw_go"
    SW = 3; SRD_WS, SRD_A, SRD_B = 8, 12, 16
    VL = 1
    A(f"s_cmp_ge_u32 s2, {GRID}")
    A(f"s_cbranch_scc1 {Lend}")
    load_ptr(A, "ws", 4); load_ptr(A, "wg", 20); load_ptr(A, "wu", 22); load_ptr(A, "wo", 24); load_ptr(A, "wd", 26)
    wave_id(A, SW, 1)
    A(f"v_and_b32 {v(VL)}, 63, v0")
    A(f"s_mul_i32 s28, {s(SW)}, 10240")
    A(f"v_lshlrev_b32 v3, 4, {v(VL)}")
    A("s_waitcnt lgkmcnt(0)")
    make_srd(A, SRD_WS, 4, WS_END)
    A("s_cmp_lt_u32 s2, 96")
    A(f"s_cbranch_scc1 {Lgu}")
    A(f"s_mov_b32 s14, {NBYTES['wd']}\ns_mov_b32 s29, 116\ns_mov_b32 s31, {WS_WD}\ns_mov_b32 s15, 0x20000")
    A("s_cmp_lt_u32 s2, 116")
    A("s_cselect_b32 s12, s24, s26\ns_cselect_b32 s13, s25, s27")
    A(f"s_cselect_b32 s14, {NBYTES['wo']}, s14")
    A("s_cselect_b32 s29, 96, s29\ns_cselect_b32 s30, 20, 48")
    A(f"s_cselect_b32 s31, {WS_WO}, s31")
    A("s_sub_u32 s29, s2, s29")
    A(f"v_lshl_add_u32 v2, {v(VL)}, 3, s28")
    f16_src_voffset(A, 8, VL, 1280, 9, 10)
    A.vm_reset()
    A(f"s_mul_i32 s33, s29, {32*1280}\ns_mul_i32 s34, {s(SW)}, 320\ns_add_u32 s33, s33, s34")
    for f in range(10):
        dma(A, 8, SRD_A, "s33", 28, f*1024, "w")
        if f < 9: A("s_add_u32 s33, s33, 32")
    A(f"s_lshl_b32 s34, {s(SW)}, 1\ns_mul_i32 s34, s34, s30\ns_add_u32 s34, s34, s29\ns_mul_i32 s34, s34, 5120\ns_add_u32 s34, s34, s31")
    A("s_mul_i32 s35, s30, 5120\ns_add_u32 s35, s35, s34")
    transpose_f16(A, 5, 2, 28, 20, SRD_WS, 3, 34, "w")
    A("v_add_u32 v2, 5120, v2")
    transpose_f16(A, 5, 2, 28, 40, SRD_WS, 3, 35, "w")
    A("s_endpgm")
    A.label(Lgu)
    make_srd(A, SRD_A, 20, NBYTES["wg"]); make_srd(A, SRD_B, 22, NBYTES["wu"])
    A.vm_reset()
    f16_src_voffset(A, 8, VL, 3072, 9, 10)
    A(f"s_mul_i32 s33, {s(SW)}, {160*3072}\ns_lshl_b32 s34, s2, 5\ns_add_u32 s33, s33, s34")
    for pp in range(5):
        dma(A, 8, SRD_A, "s33", 28, pp*2048, "w")
        dma(A, 8, SRD_B, "s33", 28, pp*2048+1024, "w")
        if pp < 4: A(f"s_add_u32 s33, s33, {32*3072}")
    A(f"v_and_b32 v4, 1, {v(VL)}\nv_mul_u32_u24 v4, 1280, v4\nv_sub_u32 v4, 5120, v4")
    A(f"v_lshrrev_b32 v5, 5, {v(VL)}\nv_lshl_add_u32 v4, v5, 4, v4")
    A(f"s_mul_i32 s35, {s(SW)}, 320\ns_add_u32 s35, s35, {WS_MODB}")
    for ss in range(10):
        A.vmem(f"buffer_load_dwordx4 {v(60+4*ss,4)}, v4, {s(SRD_WS,4)}, s35 offen offset:{32*ss}", "mb")
    A(f"v_bfe_u32 v5, {v(VL)}, 4, 1\nv_lshlrev_b32 v2, 10, v5")
    A(f"v_lshrrev_b32 v5, 5, {v(VL)}\nv_lshl_add_u32 v2, v5, 7, v2")
    A(f"v_bfe_u32 v5, {v(VL)}, 2, 2\nv_lshl_add_u32 v2, v5, 5, v2")
    A(f"v_and_b32 v5, 1, {v(VL)}\nv_lshl_add_u32 v2, v5, 4, v2")
    A(f"v_bfe_u32 v5, {v(VL)}, 1, 1\nv_lshl_add_u32 v2, v5, 3, v2")
    A("v_add_u32 v2, s28, v2")
    A("s_mul_i32 s29, s2, 10923\ns_lshr_b32 s29, s29, 16")
    A("s_mul_i32 s30, s29, 6\ns_sub_u32 s30, s2, s30")
    A(f"s_mul_i32 s29, s29, {GU_BLOCK}\ns_add_u32 s29, s29, {WS_WGU}")
    A("s_lshr_b32 s31, s30, 1\ns_mul_i32 s31, s31, 81920\ns_and_b32 s36, s30, 1\ns_lshl_b32 s36, s36, 10\ns_add_u32 s31, s31, s36")
    A(f"s_mul_i32 s36, {s(SW)}, 20480\ns_add_u32 s31, s31, s36\ns_add_u32 s31, s31, s29\ns_add_u32 s31, s31, 6144")
    A("s_lshl_b32 s30, s30, 10\ns_add_u32 s30, s30, s29")
    A.vm_wait("w")
    for ss in range(10):
        o = (ss >> 1)*2048 + (ss & 1)*256
        A(f"ds_read_b64_tr_b16 {v(20+4*ss,2)}, v2 offset:{o}")
        A(f"ds_read_b64_tr_b16 {v(22+4*ss,2)}, v2 offset:{o+512}")
        if ss % 5 == 4: A("s_waitcnt lgkmcnt(0)")
    A.vm_wait("mb")
    for ss in range(10):
        A(f"v_mfma_f32_32x32x16_bf16 v[100:115], {v(20+4*ss,4)}, {v(60+4*ss,4)}, {'0' if ss == 0 else 'v[100:115]'}")
        A.vmem(f"buffer_store_dwordx4 {v(20+4*ss,4)}, v3, {s(SRD_WS,4)}, s31 offen offset:{(ss&1)*2048}", "st")
        if ss & 1: A("s_add_u32 s31, s31, 4096")
    RB = 40960
    A(f"v_and_b32 v4, 31, {v(VL)}")
    A(f"v_lshrrev_b32 v5, 5, {v(VL)}\nv_lshlrev_b32 v5, 4, v5\nv_lshl_add_u32 v5, v4, 7, v5")
    A(f"s_lshl_b32 s36, {s(SW)}, 8\ns_add_u32 s36, s36, {RB}\nv_add_u32 v5, s36, v5")
    A("v_cmp_gt_u32 vcc, 2, v4")
    A("s_and_saveexec_b64 s[38:39], vcc")
    for q in range(4): A(f"ds_write_b128 v5, {v(100+4*q,4)} offset:{32*q}")
    A("s_mov_b64 exec, s[38:39]")
    A("s_waitcnt lgkmcnt(0)\ns_barrier")
    A(f"s_cmp_lg_u32 {s(SW)}, 0")
    A(f"s_cbranch_scc1 {Lend}")
    A("v_lshlrev_b32 v5, 2, v4")
    for w in range(4):
        A(f"ds_read_b32 {v(20+w)}, v5 offset:{RB+256*w}")
        A(f"ds_read_b32 {v(24+w)}, v5 offset:{RB+256*w+128}")
    A("s_waitcnt lgkmcnt(0)")
    for b in (20, 24):
        A(f"v_add_f32 {v(b)}, {v(b)}, {v(b+1)}\nv_add_f32 {v(b+2)}, {v(b+2)}, {v(b+3)}\nv_add_f32 {v(b)}, {v(b)}, {v(b+2)}")
    A("v_cvt_pk_bf16_f32 v28, v20, v20")
    A("v_cvt_pk_bf16_f32 v30, v24, v24")
    A("v_and_b32 v21, 0xffff0000, v28\nv_sub_f32 v21, v20, v21")
    A("v_and_b32 v25, 0xffff0000, v30\nv_sub_f32 v25, v24, v25")
    A("v_cvt_pk_bf16_f32 v29, v21, v24")
    A("v_cvt_pk_bf16_f32 v30, v24, v25")
    A("v_mov_b32 v31, 0")
    A(f"v_cmp_gt_u32 vcc, 32, {v(VL)}")
    for r in (28, 29, 30): A(f"v_cndmask_b32 {v(r)}, 0, {v(r)}, vcc")
    A(f"buffer_store_dwordx4 v[28:31], v3, {s(SRD_WS,4)}, s30 offen")
    A.label(Lend)
    A("s_endpgm")
    return A, 120, 120
```

```python
import sys, os
sys.path.insert(0, os.path.dirname(os.path.abspath(__file__)))
from emit import *
import common, k0, kp, k1, k2, k35, k4

HEADER = open(os.path.join(os.path.dirname(os.path.abspath(__file__)), "header.txt")).read()

def kernels():
    return [
        (k0.NAME, k0.gen, k0.GRID, k0.BLOCK, k0.LDS),
        (k1.NAME, k1.gen, k1.GRID, k1.BLOCK, k1.LDS),
        (kp.NAME, kp.gen, kp.GRID, kp.BLOCK, kp.LDS),
        (k2.NAME, k2.gen, k2.GRID, k2.BLOCK, k2.LDS),
        (k35.NAMES[3], lambda: k35.gen(3), k35.GRID, k35.BLOCK, k35.LDSB[3]),
        (k4.NAME, k4.gen, k4.GRID, k4.BLOCK, k4.LDS),
        (k35.NAMES[5], lambda: k35.gen(5), k35.GRID, k35.BLOCK, k35.LDSB[5]),
    ]

def build(ks=None, extra_launches=()):
    ks = ks or kernels()
    launch = [f"; @launch kernel={n} grid=({g},1,1) block=({b},1,1) lds={l}" for (n, _, g, b, l) in ks]
    launch += list(extra_launches)
    text, kds = [], []
    for (n, gen, g, b, l) in ks:
        A, vg, ac = gen()
        t, kd, nops = kernel_text(n, A, vg, ac)
        text.append(t); kds.append(kd)
    return (HEADER + "\n".join(launch) + '\n.amdgcn_target "amdgcn-amd-amdhsa--gfx950"\n.text\n' + "".join(text)
            + '.section .rodata,"a"\n' + "".join(".p2align 6\n" + kd for kd in kds))

if __name__ == "__main__":
    out = sys.argv[1] if len(sys.argv) > 1 else "adaLN_cond__grouped_kv_mqa__glu_gated_geglu__prompt.s"
    s_ = build()
    open(out, "w").write(s_)
    print("wrote", out, len(s_))
```

```python
import sys
from build import *
from emit import Asm
def nopgen():
    A = Asm(); A("s_endpgm"); return A, 8, 8
base = kernels()
nop = ("nop_kernel", nopgen, 1, 64, 0)
def with_nops(n, where):
    ks = list(base) + [nop]
    txt = build(ks)
    line = "; @launch kernel=nop_kernel grid=(1,1,1) block=(64,1,1) lds=0\n"
    txt = txt.replace(line, "")
    first = f"; @launch kernel={base[0][0]}"
    if where == "end":
        last = [l for l in txt.split("\n") if l.startswith("; @launch")][-1]
        txt = txt.replace(last + "\n", last + "\n" + line*n)
    else:
        l3 = [l for l in txt.split("\n") if l.startswith("; @launch")][3]
        txt = txt.replace(l3 + "\n", line*n + l3 + "\n")
    return txt
open("v_nop4_end.s", "w").write(with_nops(4, "end"))
open("v_nop8_end.s", "w").write(with_nops(8, "end"))
open("v_nop4_mid.s", "w").write(with_nops(4, "mid"))
```

```python
from fcommon import *

SKV, SCNT, SG, SPASS = 34, 35, 36, 37
SRD_KV = 48
VL, VKM, VKT, VV, VT0, VT1, VT2 = 1, 2, 3, 4, 5, 6, 7
QM, QT = 8, 24
KM, KT, VF = (28, 44), (32, 48), (36, 52)
PB, OA, SB = 60, 76, 140
TMP = 204
VKA, VT32 = 216, 217
NV = 216
POS = dict(m1=0, pv3=5, m2=11, pv0=17, m3=23, pv1=33, pv2=41)
OPT = dict(prio=3, k8=False, nomfma=False, novalu=False, vzero=True, touch=True, unroll=False, clk=False)

def load_k(A, buf):
    A(f"buffer_load_dwordx4 {v(KM[buf],4)}, {v(VKA)}, {s(SRD_KV,4)}, {s(SKV)} offen{SC}")
    A(f"buffer_load_dwordx2 {v(KT[buf],2)}, {v(VKT)}, {s(SRD_KV,4)}, {s(SKV)} offen offset:256{SC}")
def load_v(A, buf):
    A(f"buffer_load_dwordx4 {v(VF[buf],4)}, {v(VV)}, {s(SRD_KV,4)}, {s(SKV)} offen offset:384{SC}")
    A(f"buffer_load_dwordx4 {v(VF[buf]+4,4)}, {v(VV)}, {s(SRD_KV,4)}, {s(SKV)} offen offset:{384+2*OCT}{SC}")

def qk_ops(n):
    kt, p = n >> 1, n & 1
    S = SB + 32*p; b = kt & 1
    m1 = f"v_mfma_f32_32x32x16_bf16 {v(S,16)}, {v(KM[b],4)}, {v(QM+8*p,4)}, 0"
    m2 = f"v_mfma_f32_32x32x16_bf16 {v(S+16,16)}, {v(KM[b],4)}, {v(QM+8*p+4,4)}, 0"
    m3 = f"v_mfma_f32_32x32x4bf16_1k {v(S,32)}, {v(KT[b],2)}, {v(QT+2*p,2)}, {v(S,32)}"
    if OPT["k8"]:
        m3 = [f"v_mfma_f32_32x32x8bf16_1k {v(S+16*j,16)}, {v(KT[b],2)}, {v(QT+2*p,2)}, {v(S+16*j,16)}" for j in range(2)]
    return m1, m2, m3

def pv_op(n, q, first):
    kt, p = n >> 1, n & 1
    o = OA + 16*(2*p + (q >> 1))
    c = "0" if (first and (q & 1) == 0) else v(o, 16)
    return f"v_mfma_f32_32x32x16_bf16 {v(o,16)}, {v(VF[kt&1]+4*(q&1),4)}, {v(PB+4*(q&1),4)}, {c}"

VPF, SPF, SPF2 = 210, 39, 40
def step(A, n, head=True, touch=False):
    kt, p = n >> 1, n & 1
    S = SB + 32*p
    E = lambda q, e: f"v_exp_f32 {v(S+8*q+e)}, {v(S+8*q+e)}"
    Cv = lambda SS, q, c: f"v_cvt_pk_bf16_f32 {v(PB+4*(q&1)+c)}, {v(SS+8*q+2*c)}, {v(SS+8*q+2*c+1)}"
    va = []
    for q in range(4):
        g = [E(q,0)]
        if q > 0: g.append(Cv(S, q-1, 3))
        elif head: g.append(Cv(SB + 32*(1-p), 3, 3))
        g += [E(q,1), E(q,2), Cv(S,q,0), E(q,3), E(q,4), Cv(S,q,1), E(q,5), E(q,6), Cv(S,q,2), E(q,7)]
        va += g
    m1, m2, m3 = qk_ops(n + 1)
    ins = {}
    def at(pos, *ops): ins.setdefault(pos, []).extend(ops)
    xw = 1 if (touch and n % 4 != 0) else 0
    at(POS["m1"], *(([f"s_waitcnt vmcnt({4+xw})"] if p == 1 else []) + [m1]))
    if head:
        at(POS["pv3"], pv_op(n - 1, 3, n - 1 < 2))
        if p == 0: at(POS["pv3"], ("V", (kt - 1) & 1))
    at(POS["m2"], m2)
    at(POS["pv0"], *(([f"s_waitcnt vmcnt({4+xw})"] if p == 0 else []) + [pv_op(n, 0, n < 2)]))
    if isinstance(m3, list):
        at(POS["m3"], m3[0]); at(POS["m3b"], m3[1])
    else: at(POS["m3"], m3)
    if p == 0: at(POS.get("m3b", POS["m3"]) if OPT["k8"] else POS["m3"], ("K", kt & 1))
    if touch and n % 4 == 0:
        at(POS["m3"], f"buffer_load_dword {v(VPF+1)}, {v(VPF)}, {s(SRD_WS,4)}, {s(SPF)} offen", f"s_add_u32 {s(SPF)}, {s(SPF)}, 4096",
           f"s_cmp_eq_u32 {s(SCNT)}, 7", f"s_cselect_b32 {s(SPF)}, {s(SPF2)}, {s(SPF)}")
    at(POS["pv1"], pv_op(n, 1, n < 2)); at(POS["pv2"], pv_op(n, 2, n < 2))
    for i, op in enumerate(va):
        for x in ins.pop(i, []):
            if isinstance(x, tuple):
                if x[0] == "K": load_k(A, x[1])
                else:
                    load_v(A, x[1]); A(f"s_add_u32 {s(SKV)}, {s(SKV)}, {KVT}")
            elif not (OPT["nomfma"] and x.startswith("v_mfma")): A(x)
        if not OPT["novalu"]: A(op)
    assert not ins

def tail(A, n):
    p = n & 1
    S = SB + 32*p
    A("s_nop 0")
    A(f"v_cvt_pk_bf16_f32 {v(PB+7)}, {v(S+30)}, {v(S+31)}")
    A(pv_op(n, 3, False))

def read_q(A):
    A(f"v_lshrrev_b32 {v(VT0)}, 2, v0\nv_and_b32 {v(VT0)}, 64, {v(VT0)}")
    A(f"v_lshlrev_b32 {v(VT1)}, 6, {v(VT0)}\nv_add_u32 {v(VT1)}, {v(VT1)}, {v(VKM)}")
    A(f"v_lshlrev_b32 {v(VT2)}, 4, {v(VT0)}\nv_lshl_add_u32 {v(VT2)}, {v(VL)}, 3, {v(VT2)}")
    A(f"v_add_u32 {v(VT1)}, {L_QM}, {v(VT1)}\nv_add_u32 {v(VT2)}, {L_QT}, {v(VT2)}")
    for h in range(4): A(f"ds_read_b128 {v(QM+4*h,4)}, {v(VT1)} offset:{1024*h}")
    for p in range(2): A(f"ds_read_b64 {v(QT+2*p,2)}, {v(VT2)} offset:{512*p}")

def touch_setup(A):
    A(f"s_sub_u32 s28, {s(SW)}, 4\ns_and_b32 s28, s28, 3")
    A(f"s_and_b32 s29, {s(STG)}, 3\ns_lshl_b32 s29, s29, 2\ns_add_u32 s29, s29, s28\ns_mul_i32 s29, s29, 3840")
    A(f"s_mul_i32 s30, {s(SNG)}, 102400\ns_add_u32 s29, s29, s30\ns_add_u32 {s(SPF)}, s29, {WS_WO + 40960}")
    A(f"s_and_b32 s29, {s(STG)}, 2\ns_lshl_b32 s29, s29, 1\ns_add_u32 s29, s29, s28\ns_mul_i32 s29, s29, 24576")
    A(f"s_mul_i32 s30, {s(SFB)}, {GU_BLOCK}\ns_add_u32 s29, s29, s30\ns_add_u32 {s(SPF2)}, s29, {WS_WGU}")
    A(f"s_cmp_lt_u32 {s(SW)}, 4\ns_cselect_b32 s28, 0, {OPT.get('touch_lanes', 32)}")
    A(f"v_lshlrev_b32 {v(VPF)}, 7, {v(VL)}\nv_mov_b32 {v(VPF+1)}, 0x40000000\nv_cmp_gt_u32 vcc, s28, {v(VL)}\nv_cndmask_b32 {v(VPF)}, {v(VPF+1)}, {v(VPF)}, vcc")

def kv_start(A):
    A(f"s_and_b32 {s(SKV)}, {s(SW)}, 3\ns_mul_i32 {s(SKV)}, {s(SKV)}, {16*KVT}")

def lane_setup(A):
    A(f"v_and_b32 {v(VT0)}, 31, {v(VL)}\nv_lshlrev_b32 {v(VT32)}, 3, {v(VT0)}")
    A(f"v_bfe_u32 {v(VT1)}, {v(VL)}, 4, 1\nv_bfe_u32 {v(VT2)}, {v(VL)}, 2, 1\nv_lshl_add_u32 {v(VT1)}, {v(VT1)}, 1, {v(VT2)}")
    A(f"v_mul_u32_u24 {v(VT1)}, {OCT}, {v(VT1)}")
    A(f"v_bfe_u32 {v(VT2)}, {v(VL)}, 3, 1\nv_and_b32 {v(VKA)}, 3, {v(VL)}\nv_lshl_add_u32 {v(VT2)}, {v(VT2)}, 2, {v(VKA)}")
    A(f"v_lshl_add_u32 {v(VKT)}, {v(VT2)}, 3, {v(VT1)}")
    A(f"v_lshl_add_u32 {v(VKA)}, {v(VT2)}, 4, {v(VT1)}\nv_lshrrev_b32 {v(VT2)}, 5, {v(VL)}\nv_lshl_add_u32 {v(VKA)}, {v(VT2)}, 7, {v(VKA)}")
    A(f"v_mul_u32_u24 {v(VT2)}, {OCT}, {v(VT2)}\nv_lshl_add_u32 {v(VV)}, {v(VT0)}, 4, {v(VT2)}")
    A(f"v_cmp_lt_u32 vcc, 20, {v(VT0)}\nv_mov_b32 {v(VT1)}, 0x40000000\nv_cndmask_b32 {v(VV)}, {v(VV)}, {v(VT1)}, vcc")

def init_flag(A):
    A(f"v_mov_b32 {v(VT0)}, {L_FLAG}\nv_mov_b32 {v(VT1)}, 0\nds_write_b32 {v(VT0)}, {v(VT1)}\ns_waitcnt lgkmcnt(0)")

def qaddr(A, QADR, t):
    A(f"s_and_b32 s29, {s(SW)}, 1\ns_lshl_b32 s29, s29, 4\nv_and_b32 {v(t[0])}, 15, {v(VL)}\nv_add_u32 {v(t[0])}, s29, {v(t[0])}")
    A(f"v_lshrrev_b32 {v(t[1])}, 4, {v(VL)}")
    A(f"s_bfe_u32 s29, {s(SW)}, 0x10001\ns_lshl_b32 s30, s29, 12\ns_add_u32 s30, s30, {L_QM}\ns_lshl_b32 s29, s29, 10\ns_add_u32 s29, s29, {L_QT}")
    for i in range(5):
        A(f"v_add_u32 {v(t[2])}, {4*i}, {v(t[1])}\nv_mul_u32_u24 {v(t[3])}, 13, {v(t[2])}\nv_lshrrev_b32 {v(t[3])}, 6, {v(t[3])}")
        A(f"v_mul_u32_u24 {v(t[4])}, 5, {v(t[3])}\nv_sub_u32 {v(t[2])}, {v(t[2])}, {v(t[4])}")
        A(f"v_lshlrev_b32 {v(t[4])}, 10, {v(t[3])}\nv_lshrrev_b32 {v(t[5])}, 1, {v(t[2])}\nv_lshl_add_u32 {v(t[4])}, {v(t[5])}, 9, {v(t[4])}")
        A(f"v_lshl_add_u32 {v(t[4])}, {v(t[0])}, 4, {v(t[4])}\nv_and_b32 {v(t[5])}, 1, {v(t[2])}\nv_lshl_add_u32 {v(t[4])}, {v(t[5])}, 3, {v(t[4])}")
        A(f"v_add_u32 {v(t[4])}, s30, {v(t[4])}")
        A(f"v_lshlrev_b32 {v(t[5])}, 8, {v(t[3])}\nv_lshl_add_u32 {v(t[5])}, {v(t[0])}, 3, {v(t[5])}\nv_add_u32 {v(t[5])}, s29, {v(t[5])}")
        A(f"v_cmp_eq_u32 vcc, 4, {v(t[2])}\nv_cndmask_b32 {v(QADR+i)}, {v(t[4])}, {v(t[5])}, vcc")

def qwrite(A, QACC, QADR, T):
    A(f"s_mov_b32 s29, {fbits(20**-0.5 * 1.4426950408889634)}")
    for r in range(20): A(f"v_mul_f32 {v(QACC+r)}, s29, {v(QACC+r)}")
    for i in range(5):
        A(f"v_cvt_pk_bf16_f32 {v(T+2*i)}, {v(QACC+4*i)}, {v(QACC+4*i+1)}\nv_cvt_pk_bf16_f32 {v(T+1+2*i)}, {v(QACC+4*i+2)}, {v(QACC+4*i+3)}")
        A(f"ds_write_b64 {v(QADR+i)}, {v(T+2*i,2)}")

def attention(A, side=None):
    side = side or {}
    A(f"s_mov_b32 {s(SPASS)}, 0")
    lane_setup(A)
    load_xids(A, 28, VT0, TMP, VL)
    A(f"s_and_b32 s28, {s(SW)}, 3\ns_lshl_b32 s28, s28, 13\ns_add_u32 s28, s28, {SY_FL1}\nv_lshlrev_b32 {v(VT0)}, 7, {v(VL)}")
    poll_flags(A, 64, VT0, VT1, "s28", 29)
    A.stamp(0)
    kv_start(A)
    load_k(A, 0); load_v(A, 0)
    A(f"s_add_u32 {s(SKV)}, {s(SKV)}, {KVT}")
    load_k(A, 1); load_v(A, 1)
    A(f"s_add_u32 {s(SKV)}, {s(SKV)}, {KVT}")
    if OPT["touch"]: touch_setup(A)
    read_q(A)
    A("s_waitcnt vmcnt(6) lgkmcnt(0)")
    eval_mode(A, TMP)
    for m in qk_ops(0):
        for mm in (m if isinstance(m, list) else [m]): A(mm)
    if OPT["prio"] == 1:
        A(f"s_cmp_lt_u32 {s(SW)}, 4\ns_cbranch_scc1 Lk2_p0\ns_setprio 1\nLk2_p0:")
    if OPT["prio"] >= 2:
        A(f"s_cmp_lt_u32 {s(SW)}, 4\ns_cbranch_scc1 Lk2_p0\ns_setprio 1\ns_branch Lk2_p1\nLk2_p0:\ns_setprio 2\nLk2_p1:")
    step(A, 0, head=False)
    for n in (1, 2, 3): step(A, n)
    A.stamp(1)
    A(f"s_mov_b32 {s(SCNT)}, 7")
    A(".p2align 3")
    A.label("Lk2_loop")
    for cnt in side:
        A(f"s_cmp_eq_u32 {s(SCNT)}, {cnt}\ns_cbranch_scc1 Lk2_side{cnt}")
    A.label("Lk2_body")
    for n in (4, 5, 6, 7):
        step(A, n, touch=OPT["touch"])
        if OPT["prio"] >= 2 and n == 7:
            A(f"s_cmp_lg_u32 {s(SCNT)}, {OPT['prio']}\ns_cbranch_scc1 Lk2_p2\ns_cmp_ge_u32 {s(SW)}, 4\ns_cbranch_scc1 Lk2_p2\ns_setprio 0\nLk2_p2:")
    A(f"s_sub_u32 {s(SCNT)}, {s(SCNT)}, 1\ns_cmp_lg_u32 {s(SCNT)}, 0\ns_cbranch_scc1 Lk2_loop")
    tail(A, 7)
    A.stamp(2)
    A.label("Lk2_red")
    A(f"s_and_b32 s28, {s(SW)}, 3\ns_lshl_b32 s28, s28, 1\ns_lshr_b32 s29, {s(SW)}, 2\ns_add_u32 s28, s28, s29\ns_mul_i32 s28, s28, 12288")
    A(f"v_add_u32 {v(VT0)}, s28, {v(VKM)}")
    for h in range(4):
        for q in range(3): A(f"ds_write_b128 {v(VT0)}, {v(OA+16*h+4*q,4)} offset:{3072*h+1024*q}")
    A(f"v_lshrrev_b32 {v(VT1)}, 5, {v(VL)}\nv_mul_u32_u24 {v(VT1)}, 12288, {v(VT1)}\nv_lshl_add_u32 {v(VT1)}, {v(VT32)}, 1, {v(VT1)}")
    A(f"v_lshrrev_b32 {v(VT2)}, 4, {v(VL)}\nv_mul_u32_u24 {v(VT2)}, 20480, {v(VT2)}\nv_and_b32 {v(TMP)}, 15, {v(VL)}\nv_lshl_add_u32 {v(VT2)}, {v(TMP)}, 4, {v(VT2)}")
    A(f"s_mov_b32 {s(SG)}, {s(SW)}")
    A(f"s_mov_b32 s38, 0x1f800000\nv_mov_b32 {v(TMP+1)}, 0x5f800000")
    A("s_waitcnt vmcnt(0) lgkmcnt(0)\ns_barrier")
    A.stamp(3)
    A.label("Lk2_item")
    R0, LR = 60, 100
    for e in range(2):
        A(f"s_lshl_b32 s28, {s(SG)}, 1\ns_add_u32 s28, s28, {e}\ns_mul_i32 s29, s28, 13\ns_lshr_b32 s29, s29, 6")
        A("s_mul_i32 s30, s29, 5\ns_sub_u32 s30, s28, s30\ns_mul_i32 s29, s29, 3072\ns_lshl_b32 s30, s30, 9\ns_add_u32 s30, s30, s29")
        A(f"v_add_u32 {v(TMP+2)}, s30, {v(VT1)}\nv_add_u32 {v(TMP+3)}, 49152, {v(TMP+2)}")
        A(f"v_add_u32 {v(TMP+4)}, s29, {v(VT1)}\nv_add_u32 {v(TMP+5)}, 49152, {v(TMP+4)}")
        for kq in range(4):
            A(f"ds_read_b128 {v(R0+16*e+4*kq,4)}, {v(TMP+2+(kq>>1))} offset:{24576*(kq&1)}")
            A(f"ds_read_b32 {v(LR+4*e+kq)}, {v(TMP+4+(kq>>1))} offset:{24576*(kq&1)+2560}")
    A(f"s_mul_i32 s28, {s(STG)}, 81920\ns_mul_i32 s29, {s(SNG)}, 10\ns_add_u32 s29, s29, {s(SG)}\ns_lshl_b32 s29, s29, 8\ns_add_u32 s28, s28, s29\ns_add_u32 s28, s28, {WS_O}")
    for e in range(2):
        A(f"s_waitcnt lgkmcnt({8*(1-e)})")
        L = LR + 4*e; R = R0 + 16*e
        A(f"v_add_f32 {v(L)}, {v(L)}, {v(L+1)}\nv_add_f32 {v(L+2)}, {v(L+2)}, {v(L+3)}\nv_add_f32 {v(L)}, {v(L)}, {v(L+2)}")
        A(f"v_rcp_f32 {v(L+1)}, {v(L)}")
        A(f"v_med3_f32 {v(L+2)}, {v(L)}, s38, {v(TMP+1)}")
        A(f"v_cmp_neq_f32 {'vcc' if e == 0 else 's[30:31]'}, {v(L+2)}, {v(L)}")
        for r in range(4):
            A(f"v_add_f32 {v(R+r)}, {v(R+r)}, {v(R+4+r)}\nv_add_f32 {v(R+8+r)}, {v(R+8+r)}, {v(R+12+r)}")
        for r in range(4):
            A(f"v_add_f32 {v(R+r)}, {v(R+r)}, {v(R+8+r)}")
        for r in range(4):
            A(f"v_mul_f32 {v(R+r)}, {v(R+r)}, {v(L+1)}")
        A(f"v_cvt_pk_bf16_f32 {v(108+2*e)}, {v(R)}, {v(R+1)}\nv_cvt_pk_bf16_f32 {v(109+2*e)}, {v(R+2)}, {v(R+3)}")
    A(f"buffer_store_dwordx4 v[108:111], {v(VT2)}, {s(SRD_WS,4)}, s28 offen{SC}")
    A("s_or_b64 vcc, vcc, s[30:31]")
    A("s_cbranch_vccz Lk2_ok")
    A(f"v_mov_b32 {v(TMP+2)}, {L_FLAG}\nv_mov_b32 {v(TMP+3)}, 1\nds_write_b32 {v(TMP+2)}, {v(TMP+3)}")
    A.label("Lk2_ok")
    A(f"s_add_u32 {s(SG)}, {s(SG)}, 8\ns_cmp_lt_u32 {s(SG)}, 10\ns_cbranch_scc1 Lk2_item")
    A("s_waitcnt lgkmcnt(0)\ns_barrier")
    A(f"s_cmp_lg_u32 {s(SPASS)}, 0\ns_cbranch_scc1 Lk2_done")
    A(f"v_mov_b32 {v(TMP+2)}, {L_FLAG}\nds_read_b32 {v(TMP+3)}, {v(TMP+2)}\ns_waitcnt lgkmcnt(0)")
    A(f"v_readfirstlane_b32 s28, {v(TMP+3)}\ns_cmp_eq_u32 s28, 0\ns_cbranch_scc1 Lk2_done")
    slow_path(A)
    for cnt, fn in side.items():
        A.label(f"Lk2_side{cnt}")
        A(f"s_cmp_lt_u32 {s(SW)}, 4\ns_cbranch_scc1 Lk2_body")
        fn(A)
        A("s_branch Lk2_body")
    A.label("Lk2_done")
    A("s_setprio 0")
    A.vm_drain()
    A(f"s_lshl_b32 s25, {s(STG)}, 6\ns_lshl_b32 s26, {s(SNG)}, 3\ns_add_u32 s25, s25, s26\ns_add_u32 s25, s25, {s(SW)}\ns_lshl_b32 s25, s25, 2\ns_add_u32 s25, s25, {SY_FL2}")
    set_flag(A, "s25", VT0, VT1)
    A.stamp(4)


def slow_path(A):
    A(f"s_mov_b32 {s(SPASS)}, 1")
    A("s_waitcnt vmcnt(0)")
    K8 = 204
    MX = 212
    A(f"v_lshrrev_b32 {v(VT0)}, 2, v0\nv_and_b32 {v(VT0)}, 64, {v(VT0)}\nv_lshlrev_b32 {v(VT0)}, 4, {v(VT0)}")
    A(f"v_add_u32 {v(VT0)}, {v(VT0)}, {v(VT32)}\nv_add_u32 {v(VT0)}, {L_QT}, {v(VT0)}")
    for h in range(4): A(f"ds_read_b64 {v(K8+2*h,2)}, {v(VT0)} offset:{256*h}")
    A(f"v_cmp_gt_u32 s[32:33], 32, {v(VL)}")
    A("s_waitcnt lgkmcnt(0)")
    for r in range(8): A(f"v_cndmask_b32 {v(K8+r)}, 0, {v(K8+r)}, s[32:33]")
    def ktile(A, with_v):
        load_k(A, 0)
        if with_v: load_v(A, 0)
        A(f"s_add_u32 {s(SKV)}, {s(SKV)}, {KVT}")
        A(f"v_mov_b32 {v(VT1)}, 0x3f803f80")
        A("s_waitcnt vmcnt(0)")
        A(f"v_cndmask_b32 {v(KT[0])}, {v(VT1)}, {v(KT[0])}, s[32:33]\nv_cndmask_b32 {v(KT[0]+1)}, 0, {v(KT[0]+1)}, s[32:33]")
    def scores(A, h):
        A(f"v_mfma_f32_32x32x16_bf16 {v(SB,16)}, {v(KM[0],4)}, {v(QM+4*h,4)}, 0")
        A(f"v_mfma_f32_32x32x8bf16_1k {v(SB,16)}, {v(KT[0],2)}, {v(K8+2*h,2)}, {v(SB,16)}")
    for h in range(4): A(f"v_mov_b32 {v(MX+h)}, 0xff800000")
    kv_start(A)
    A(f"s_mov_b32 {s(SCNT)}, 16")
    A.label("Lk2_max")
    ktile(A, False)
    for h in range(4):
        scores(A, h)
        for r in range(0, 16, 2): A(f"v_max3_f32 {v(MX+h)}, {v(SB+r)}, {v(SB+r+1)}, {v(MX+h)}")
    A(f"s_sub_u32 {s(SCNT)}, {s(SCNT)}, 1\ns_cmp_lg_u32 {s(SCNT)}, 0\ns_cbranch_scc1 Lk2_max")
    A(f"v_lshrrev_b32 {v(VT0)}, 2, v0\nv_and_b32 {v(VT0)}, 64, {v(VT0)}\nv_lshlrev_b32 {v(VT0)}, 6, {v(VT0)}")
    A(f"v_lshl_add_u32 {v(VT0)}, {v(VT32)}, 2, {v(VT0)}")
    A(f"v_lshrrev_b32 {v(VT1)}, 5, {v(VL)}\ns_and_b32 s28, {s(SW)}, 3\ns_lshl_b32 s28, s28, 3\nv_lshl_add_u32 {v(VT1)}, {v(VT1)}, 2, s28\nv_add_u32 {v(VT1)}, {v(VT0)}, {v(VT1)}")
    for h in range(4): A(f"ds_write_b32 {v(VT1)}, {v(MX+h)} offset:{1024*h}")
    A("s_waitcnt lgkmcnt(0)\ns_barrier")
    for h in range(4):
        A(f"ds_read_b128 {v(SB,4)}, {v(VT0)} offset:{1024*h}\nds_read_b128 {v(SB+4,4)}, {v(VT0)} offset:{1024*h+16}\ns_waitcnt lgkmcnt(0)")
        A(f"v_max3_f32 {v(SB)}, {v(SB)}, {v(SB+1)}, {v(SB+2)}\nv_max3_f32 {v(SB)}, {v(SB)}, {v(SB+3)}, {v(SB+4)}")
        A(f"v_max3_f32 {v(SB)}, {v(SB)}, {v(SB+5)}, {v(SB+6)}\nv_max_f32 {v(SB)}, {v(SB)}, {v(SB+7)}")
        A(f"v_sub_f32 {v(SB)}, 0, {v(SB)}\nv_cvt_pk_bf16_f32 {v(SB+1)}, {v(SB)}, {v(SB)}\nv_and_b32 {v(SB+1)}, 0xffff0000, {v(SB+1)}")
        A(f"v_sub_f32 {v(SB+2)}, {v(SB)}, {v(SB+1)}\nv_cvt_pk_bf16_f32 {v(SB+1)}, {v(SB+1)}, {v(SB+2)}")
        A(f"v_cndmask_b32 {v(K8+2*h)}, {v(SB+1)}, {v(K8+2*h)}, s[32:33]")
    for r in range(64): A(f"v_mov_b32 {v(OA+r)}, 0")
    A("s_barrier")
    kv_start(A)
    A(f"s_mov_b32 {s(SCNT)}, 16")
    A.label("Lk2_slow")
    ktile(A, True)
    for h in range(4):
        scores(A, h)
        for r in range(16): A(f"v_exp_f32 {v(SB+r)}, {v(SB+r)}")
        for r in range(8): A(f"v_cvt_pk_bf16_f32 {v(PB+r)}, {v(SB+2*r)}, {v(SB+2*r+1)}")
        for m in range(2):
            A(f"v_mfma_f32_32x32x16_bf16 {v(OA+16*h,16)}, {v(VF[0]+4*m,4)}, {v(PB+4*m,4)}, {v(OA+16*h,16)}")
    A(f"s_sub_u32 {s(SCNT)}, {s(SCNT)}, 1\ns_cmp_lg_u32 {s(SCNT)}, 0\ns_cbranch_scc1 Lk2_slow")
    A("s_branch Lk2_red")
```

```python
import re

def v(i, n=1):
    return f"v{i}" if n == 1 else f"v[{i}:{i+n-1}]"
def a(i, n=1):
    return f"a{i}" if n == 1 else f"a[{i}:{i+n-1}]"
def s(i, n=1):
    return f"s{i}" if n == 1 else f"s[{i}:{i+n-1}]"

_REG = re.compile(r"^-?\|?(?:abs\()?([vas])(?:(\d+)|\[(\d+):(\d+)\])\)?\|?$")

def regs_of(tok):
    tok = tok.strip()
    if tok in ("vcc",): return {("s", 106), ("s", 107)}
    if tok == "vcc_lo": return {("s", 106)}
    if tok == "vcc_hi": return {("s", 107)}
    if tok == "exec": return {("s", 126), ("s", 127)}
    if tok == "exec_lo": return {("s", 126)}
    if tok == "exec_hi": return {("s", 127)}
    if tok == "m0": return {("s", 124)}
    m = _REG.match(tok)
    if not m: return set()
    k = m.group(1)
    if m.group(2) is not None:
        return {(k, int(m.group(2)))}
    return {(k, i) for i in range(int(m.group(3)), int(m.group(4)) + 1)}

TRANS = ("v_exp_f32", "v_log_f32", "v_rcp_f32", "v_rsq_f32", "v_sqrt_f32", "v_sin_f32", "v_cos_f32", "v_rcp_iflag_f32")
MFMA_PASSES = {"v_mfma_f32_32x32x16_bf16": 8, "v_mfma_f32_16x16x32_bf16": 4, "v_mfma_f32_32x32x8bf16_1k": 8,
               "v_mfma_f32_32x32x4bf16_1k": 16}

class Ins:
    __slots__ = ("text", "op", "ops", "kind", "defs", "uses", "srcc", "srcab", "dpp", "states", "label", "target", "passes", "stdata", "lds_dma")
    def __init__(self, text):
        self.text = text
        self.label = None; self.target = None; self.passes = 0
        self.defs = set(); self.uses = set(); self.srcc = set(); self.srcab = set(); self.stdata = set()
        self.dpp = False; self.states = 1; self.lds_dma = False
        t = text.split(";")[0].strip()
        if not t or t.startswith("."):
            self.kind = "none"; self.op = ""; self.ops = []; self.states = 0; return
        if t.endswith(":"):
            self.kind = "label"; self.label = t[:-1]; self.op = ""; self.ops = []; self.states = 0; return
        parts = t.split(None, 1)
        op = parts[0]
        self.op = op = re.sub(r"_(e32|e64|dpp|sdwa)$", "", op)
        rest = parts[1] if len(parts) > 1 else ""
        toks = [x.strip() for x in rest.split(",")] if rest else []
        mods = ""
        if toks:
            last = toks[-1].split(None, 1)
            if len(last) > 1:
                toks[-1] = last[0]; mods = last[1]
        if "op_sel" in rest and "[" in mods and "," in rest:
            m = re.search(r"\s(op_sel|op_sel_hi|neg_lo|neg_hi):", rest)
            if m:
                toks = [x.strip() for x in rest[:m.start()].split(",")]; mods = rest[m.start():]
        self.ops = toks
        R = [regs_of(x) for x in toks]
        if op.startswith("v_mfma"):
            self.kind = "mfma"; self.passes = MFMA_PASSES[op]
            self.defs = R[0]; self.srcab = R[1] | R[2]; self.srcc = R[3]; self.uses = self.srcab | self.srcc
        elif op.startswith("v_"):
            self.kind = "valu"
            self.dpp = ("quad_perm" in mods or "row_" in mods or "wave_" in mods)
            if op.startswith("v_cmp"):
                self.defs = R[0]; self.uses = set().union(*R[1:])
            elif op in ("v_permlane32_swap_b32", "v_permlane16_swap_b32"):
                self.defs = R[0] | R[1]; self.uses = R[0] | R[1]; self.kind = "permlane"
            elif op in ("v_add_co_u32", "v_sub_co_u32", "v_addc_co_u32", "v_subb_co_u32", "v_mad_u64_u32"):
                self.defs = R[0] | R[1]; self.uses = set().union(*R[2:])
            elif op in ("v_readfirstlane_b32", "v_readlane_b32"):
                self.defs = R[0]; self.uses = set().union(*R[1:]); self.kind = "readlane"
            else:
                self.defs = R[0]; self.uses = set().union(*R[1:]) if len(R) > 1 else set()
                if op in ("v_fmac_f32", "v_writelane_b32", "v_pk_fmac_f16", "v_dot2c_f32_bf16") or "UNUSED_PRESERVE" in mods or self.dpp:
                    self.uses |= R[0]
                if op == "v_cndmask_b32" and len(toks) == 3:
                    self.uses |= regs_of("vcc")
        elif op.startswith("buffer_") or op.startswith("global_"):
            self.kind = "vmem"
            words = rest.split()
            if op.startswith("buffer_load") and " lds" in " " + mods:
                self.lds_dma = True; self.uses = set().union(*R) | regs_of("m0")
            elif op.startswith("global_load_lds"):
                self.lds_dma = True; self.uses = set().union(*R) | regs_of("m0")
            elif op.startswith("buffer_load"):
                self.defs = R[0]; self.uses = set().union(*R[1:])
            elif op.startswith("global_load"):
                self.defs = R[0]; self.uses = set().union(*R[1:])
            elif op.startswith("buffer_store"):
                self.uses = set().union(*R)
                if len(R[0]) >= 3: self.stdata = R[0]
            elif op.startswith("global_store"):
                self.uses = set().union(*R)
                if len(R[1]) >= 3: self.stdata = R[1]
            elif "atomic" in op:
                self.uses = set().union(*R)
                if "sc0" in mods: self.defs = R[0]
            else:
                self.uses = set().union(*R) if R else set()
        elif op.startswith("ds_"):
            self.kind = "ds"
            if op.startswith("ds_read") or op.startswith("ds_bpermute") or op.startswith("ds_swizzle") or "_rtn" in op:
                self.defs = R[0]; self.uses = set().union(*R[1:])
            else:
                self.uses = set().union(*R)
        elif op == "s_nop":
            self.kind = "salu"; self.states = int(toks[0], 0) + 1
        elif op.startswith("s_cbranch") or op == "s_branch":
            self.kind = "branch"; self.target = toks[0]
        elif op == "s_endpgm":
            self.kind = "end"
        elif op.startswith("s_load") or op.startswith("s_buffer_load") or op.startswith("s_memtime") or op.startswith("s_memrealtime"):
            self.kind = "smem"; self.defs = R[0]; self.uses = set().union(*R[1:]) if len(R) > 1 else set()
        elif op.startswith("s_"):
            self.kind = "salu"
            if op.startswith("s_cmp") or op in ("s_waitcnt", "s_barrier", "s_setprio", "s_sleep", "s_bitcmp0_b32", "s_bitcmp1_b32"):
                self.uses = set().union(*R) if R else set()
            elif "saveexec" in op:
                self.defs = R[0] | regs_of("exec"); self.uses = R[1] | regs_of("exec")
            else:
                self.defs = R[0] if R else set(); self.uses = set().union(*R[1:]) if len(R) > 1 else set()
        else:
            raise ValueError("unknown op " + text)

def vregs(rs): return {r for r in rs if r[0] in "va"}
def sregs(rs): return {r for r in rs if r[0] == "s"}

def need(p, c):
    n = 0
    pv = p.kind in ("valu", "permlane", "readlane")
    cv = c.kind in ("valu", "permlane", "readlane")
    if pv:
        dv = vregs(p.defs); ds_ = sregs(p.defs)
        if c.kind == "mfma" and dv & c.uses: n = max(n, 2)
        if c.kind == "readlane" and dv & c.uses: n = max(n, 1)
        if (c.kind == "permlane" or c.dpp) and dv & c.uses: n = max(n, 2)
        if p.op in TRANS and cv and c.op not in TRANS and dv & c.uses: n = max(n, 1)
        if p.op in TRANS and cv and c.op in TRANS and dv & c.uses: n = max(n, 1)
        if ds_:
            if cv and ds_ & c.uses: n = max(n, 4 if c.op in ("v_readlane_b32", "v_writelane_b32") else 2)
            if c.kind == "vmem" and ds_ & c.uses: n = max(n, 5)
            if c.kind in ("salu", "smem", "branch") and ds_ & c.uses: n = max(n, 2)
            if c.kind == "branch" and "vcc" in c.op and ds_ & regs_of("vcc"): n = max(n, 2)
    if p.kind == "mfma":
        P = p.passes
        D = p.defs
        if c.kind == "mfma":
            if D & c.srcc:
                if D == c.srcc and c.passes == P: n = max(n, 2 if P == 2 else 0)
                else: n = max(n, P + 2)
            if D & c.srcab: n = max(n, P + 4)
            if D & c.defs and not (D == c.defs and c.passes == P) and not (D & c.srcc):
                n = max(n, P + 2)
        elif cv:
            if D & (c.uses | c.defs): n = max(n, P + 4)
            if p.srcc & c.defs: n = max(n, P - 1)
        elif c.kind in ("vmem", "ds"):
            if D & (c.uses | c.defs): n = max(n, P + 4)
            if p.srcc & c.defs: n = max(n, P - 1)
    if p.kind == "salu" and ("s", 124) in p.defs and c.lds_dma: n = max(n, 1)
    if p.kind == "vmem" and p.stdata:
        if cv and p.stdata & c.defs: n = max(n, 2)
        elif c.kind in ("mfma", "ds", "vmem") and p.stdata & c.defs: n = max(n, 1)
    return n

MAXD = 22

class Asm:
    def __init__(self):
        self.lines = []
        self.vm = []
        self.uid = 0
    def __call__(self, text):
        for t in text.split("\n"):
            t = t.strip()
            if t: self.lines.append(t)
    def stamp(self, i): self.lines.append(f";STAMP {i}")
    def rstamp(self, i): self.lines.append(f";RSTAMP {i}")
    def label(self, name): self.lines.append(name + ":")
    def newlabel(self, base):
        self.uid += 1
        return f"L{base}_{self.uid}"
    def vm_reset(self): self.vm = []
    def vmem(self, text, tag=None):
        self(text); self.vm.append(tag)
    def vm_wait(self, tag, extra=""):
        idx = [i for i, t in enumerate(self.vm) if t == tag]
        if not idx:
            if extra: self(f"s_waitcnt {extra}")
            return
        n = len(self.vm) - 1 - idx[-1]
        assert n <= 63
        self(f"s_waitcnt vmcnt({n}) {extra}".strip())
        self.vm = self.vm[idx[-1] + 1:]
    def vm_drain(self, extra=""):
        self(f"s_waitcnt vmcnt(0) {extra}".strip()); self.vm = []

def pad(lines, verbose=False):
    ins = [Ins(t) for t in lines]
    total = 0
    state = {}
    def rebuild():
        labels = {x.label: i for i, x in enumerate(ins) if x.kind == "label"}
        preds = {}
        for i, x in enumerate(ins):
            if x.kind == "branch":
                assert x.target in labels, x.text
                preds.setdefault(labels[x.target], []).append(i)
        state["preds"] = preds
    def walk(i, dist, c, seen, fall):
        best = 0
        j = i - 1
        preds = state["preds"]
        while j >= 0 and dist < MAXD:
            x = ins[j]
            if x.kind == "label":
                for pj in preds.get(j, []):
                    key = (pj, dist)
                    if key not in seen:
                        seen.add(key)
                        best = max(best, walk(pj + 1, dist, c, seen, False))
                j -= 1; fall = True; continue
            if x.kind == "none":
                j -= 1; continue
            if fall and (x.kind == "end" or x.op == "s_branch"): break
            d = need(x, c) - dist
            if d > best: best = d
            dist += x.states
            fall = True
            j -= 1
        return best
    for _round in range(20):
        rebuild()
        changed = False
        i = 0
        while i < len(ins):
            c = ins[i]
            if c.kind not in ("none", "label", "end"):
                d = walk(i, 0, c, set(), True)
                if d > 0:
                    if verbose: print("pad", d, "before", c.text)
                    k = d; new = []
                    while k > 0:
                        m = min(k, 16); new.append(Ins(f"s_nop {m-1}")); k -= m
                    ins[i:i] = new
                    i += len(new); total += d; changed = True
                    rebuild()
            i += 1
        if not changed: break
    else:
        raise RuntimeError("pad did not converge")
    return [x.text for x in ins], total

STAMP_BASE = 0x1800000
STAMP_STRIDE = 0x100000
def instrument(lines, kidx):
    pre = ["s_memrealtime s[92:93]", "s_memtime s[98:99]", "s_load_dwordx2 s[94:95], s[0:1], 104", "v_lshrrev_b32 v1, 6, v0", "s_nop 0",
           "v_readfirstlane_b32 s96, v1", "s_lshl_b32 s97, s2, 4", "s_nop 0", "s_add_u32 s96, s96, s97", "s_lshl_b32 s96, s96, 7",
           f"s_add_u32 s96, s96, {STAMP_BASE + kidx*STAMP_STRIDE}"]
    pre += [f"s_mov_b32 s{52+2*i}, 0" for i in range(18)]
    post = ["s_waitcnt vmcnt(0) lgkmcnt(0)", "s_memrealtime s[90:91]", "s_memtime s[88:89]", "s_mov_b64 exec, 1", "v_mov_b32 v0, s96", "v_mov_b32 v2, s92",
            "s_waitcnt lgkmcnt(0)", "v_mov_b32 v3, s90", "v_mov_b32 v4, s98", "v_mov_b32 v5, s88", "global_store_dwordx4 v0, v[2:5], s[94:95]"]
    for q in range(5):
        post += [f"v_mov_b32 v{6+4*q+j}, s{52+2*min(4*q+j, 17)}" for j in range(4)]
        post += [f"global_store_dwordx4 v0, v[{6+4*q}:{9+4*q}], s[94:95] offset:{16+16*q}"]
    post += ["s_endpgm"]
    out = list(pre)
    for l in lines:
        if l.strip() == "s_endpgm": out += post
        elif l.startswith(";STAMP"):
            i = int(l.split()[1]); out.append(f"s_memtime s[{52+2*i}:{53+2*i}]")
        elif l.startswith(";RSTAMP"):
            i = int(l.split()[1]); out.append(f"s_memrealtime s[{52+2*i}:{53+2*i}]")
        else: out.append(l)
    return out

def kernel_text(name, asm, vgpr, accum, sgpr=102, stamp=None):
    lines = [l for l in asm.lines if not l.startswith((";STAMP", ";RSTAMP"))] if stamp is None else instrument(asm.lines, stamp)
    body, nops = pad(lines)
    head = f".globl {name}\n.p2align 8\n.type {name},@function\n{name}:\n"
    kd = (f".amdhsa_kernel {name}\n  .amdhsa_next_free_vgpr {vgpr}\n  .amdhsa_next_free_sgpr {sgpr}\n"
          f"  .amdhsa_accum_offset {accum}\n  .amdhsa_group_segment_fixed_size 0\n  .amdhsa_kernarg_size 112\n"
          f"  .amdhsa_user_sgpr_count 2\n  .amdhsa_user_sgpr_kernarg_segment_ptr 1\n"
          f"  .amdhsa_system_sgpr_workgroup_id_x 1\n  .amdhsa_float_denorm_mode_32 3\n.end_amdhsa_kernel\n")
    return head + "\n".join(body) + "\n", kd, nops
```

```python
from common import *
import struct
def fbits(x): return "0x%08x" % struct.unpack("<I", struct.pack("<f", x))[0]

WS_SYNC  = 0x17A8000
SY_EPOCH = WS_SYNC
SY_XID   = WS_SYNC + 0x100
SY_FLP   = WS_SYNC + 0x800
SY_FL2   = WS_SYNC + 0x1000
SY_FL3   = WS_SYNC + 0x3000
SY_FL4   = WS_SYNC + 0x5000
SY_FL1   = WS_SYNC + 0x9000
SY_MODG  = WS_SYNC + 0x11000
WS_KV2   = WS_SYNC + 0x19000
OCT = 768
KVT = 4 * OCT
WS_TOP   = WS_KV2 + 256 * OCT

SLOT = 20480
L_XTRA = 7 * SLOT
L_MISC = L_XTRA + 6144
L_QM, L_QT = L_MISC, L_MISC + 8192
L_X1 = L_MISC
L_FLAG = L_MISC + 10240
LDS_ALL = 163840
def slot_of(n): return ((n + 5) % 7) * SLOT

SW, STG, SNG, SFB, STAG = 3, 20, 21, 22, 23
SMODE, SXCC = 41, 42
SRD_WS, SRD_X, SRD_OUT = 8, 12, 16
SPIN = 1 << 20
SC = " sc1"

def ids(A):
    A(f"s_and_b32 {s(STG)}, s2, 7\ns_lshl_b32 {s(STG)}, {s(STG)}, 2\ns_lshr_b32 {s(SNG)}, s2, 6\ns_add_u32 {s(STG)}, {s(STG)}, {s(SNG)}")
    A(f"s_bfe_u32 {s(SNG)}, s2, 0x30003")
    A(f"s_and_b32 {s(SFB)}, {s(STG)}, 1\ns_lshl_b32 {s(SFB)}, {s(SFB)}, 3\ns_add_u32 {s(SFB)}, {s(SFB)}, {s(SNG)}")

def read_epoch(A, ptr, tmp):
    A(f"s_add_u32 {s(tmp)}, {s(ptr)}, {SY_EPOCH}\ns_addc_u32 {s(tmp+1)}, {s(ptr+1)}, 0")
    A(f"s_load_dword {s(STAG)}, {s(tmp,2)}, 0")
def epoch_to_tag(A):
    A(f"s_mul_i32 {s(STAG)}, {s(STAG)}, 1664525\ns_add_u32 {s(STAG)}, {s(STAG)}, 1013904223")

def set_flag(A, soff, vt0, vt1, local=True):
    A(f"s_mov_b64 exec, 1\nv_mov_b32 {v(vt0)}, 0\nv_mov_b32 {v(vt1)}, {s(STAG)}")
    if local:
        Ls = A.newlabel("flsafe"); Ld = A.newlabel("fldone")
        A(f"s_cmp_eq_u32 {s(SMODE)}, 0\ns_cbranch_scc1 {Ls}")
        A(f"buffer_store_dword {v(vt1)}, {v(vt0)}, {s(SRD_WS,4)}, {soff} offen")
        A(f"s_branch {Ld}")
        A.label(Ls)
    A.vmem(f"buffer_store_dword {v(vt1)}, {v(vt0)}, {s(SRD_WS,4)}, {soff} offen{SC}", "flag")
    if local: A.label(Ld)
    A("s_mov_b64 exec, -1")

def xid_addr(A, sdst):
    A(f"s_lshr_b32 {s(sdst)}, {s(STG)}, 1\ns_lshl_b32 {s(sdst)}, {s(sdst)}, 6\ns_add_u32 {s(sdst)}, {s(sdst)}, {SY_XID}")
def publish_xid(A, st, vt0, vt1):
    L = A.newlabel("noxid")
    A(f"s_getreg_b32 {s(SXCC)}, hwreg(HW_REG_XCC_ID, 0, 4)\ns_add_u32 {s(SXCC)}, {s(SXCC)}, {s(STAG)}")
    A(f"s_cmp_lg_u32 {s(SW)}, 4\ns_cbranch_scc1 {L}")
    xid_addr(A, st)
    A(f"s_lshl_b32 {s(st+1)}, {s(SFB)}, 2\ns_add_u32 {s(st)}, {s(st)}, {s(st+1)}")
    A(f"s_mov_b64 exec, 1\nv_mov_b32 {v(vt0)}, 0\nv_mov_b32 {v(vt1)}, {s(SXCC)}")
    A(f"buffer_store_dword {v(vt1)}, {v(vt0)}, {s(SRD_WS,4)}, {s(st)} offen{SC}\ns_mov_b64 exec, -1")
    A.label(L)
def load_xids(A, st, vt0, vdst, vlane):
    xid_addr(A, st)
    A(f"v_and_b32 {v(vt0)}, 15, {v(vlane)}\nv_lshlrev_b32 {v(vt0)}, 2, {v(vt0)}")
    A(f"buffer_load_dword {v(vdst)}, {v(vt0)}, {s(SRD_WS,4)}, {s(st)} offen{SC}")
def eval_mode(A, vdst):
    A(f"v_cmp_ne_u32 vcc, {s(SXCC)}, {v(vdst)}\ns_cmp_eq_u64 vcc, 0\ns_cselect_b32 {s(SMODE)}, 1, 0")

def l2_touch(A, soff, vaddr128, vdst, n, stmp):
    for i in range(n):
        if i: A(f"s_add_u32 {soff}, {soff}, 8192")
        A(f"buffer_load_dword {v(vdst)}, {v(vaddr128)}, {s(SRD_WS,4)}, {soff} offen")

def poll_flags(A, n, vaddr, vt, soff, scnt, first_loaded=False):
    L = A.newlabel("poll"); Ld = A.newlabel("polled"); Lc = A.newlabel("pollchk")
    if n < 64: A(f"s_mov_b32 exec_lo, {hex(((1 << n) - 1) & 0xffffffff)}\ns_mov_b32 exec_hi, {hex(((1 << n) - 1) >> 32)}")
    A(f"s_mov_b32 {s(scnt)}, {SPIN}")
    if first_loaded: A(f"s_branch {Lc}")
    A.label(L)
    A(f"buffer_load_dword {v(vt)}, {v(vaddr)}, {s(SRD_WS,4)}, {soff} offen{SC}")
    A.label(Lc)
    A("s_waitcnt vmcnt(0)")
    A(f"v_cmp_ne_u32 vcc, {s(STAG)}, {v(vt)}")
    A(f"s_cbranch_vccz {Ld}")
    A(f"s_sleep 1\ns_sub_u32 {s(scnt)}, {s(scnt)}, 1\ns_cmp_lg_u32 {s(scnt)}, 0\ns_cbranch_scc1 {L}")
    A.label(Ld)
    if n < 64: A("s_mov_b64 exec, -1")
    A.vm_reset()
```

```python
from fcommon import *
import attn

VL, VL16 = 1, 2
SRD_A, SRD_B = 16, 48
SM, SE, SSTRIP, SW4 = 44, 45, 46, 43
L_WQ, L_WKV, L_MODSA, L_LNX, L_KVRED = 0, 102400, 128000, 133120, 134144
L_SILU, L_MSTAGE = 138240, 143360
L_QRED = 102400
L_CNT = L_FLAG + 16
OPT = dict(nq1=13, flag_ks=6)

def job_ids(A):
    A(f"s_lshr_b32 {s(SM)}, s2, 5\ns_lshl_b32 {s(SM)}, {s(SM)}, 3\ns_and_b32 s25, s2, 7\ns_add_u32 {s(SM)}, {s(SM)}, s25")
    A(f"s_bfe_u32 {s(SE)}, s2, 0x20003\ns_lshl_b32 {s(SSTRIP)}, {s(SM)}, 2\ns_add_u32 {s(SSTRIP)}, {s(SSTRIP)}, {s(SE)}")

def srd_from_kernarg(A, srd, name):
    A(f"s_load_dwordx2 {s(srd,2)}, s[0:1], {KA[name]}")
    A(f"s_mov_b32 {s(srd+2)}, {NBYTES[name]}\ns_mov_b32 {s(srd+3)}, 0x20000")

def mod_issue(A, stage, R):
    A.vmem(f"buffer_load_dwordx4 {v(R,4)}, {v(VL16)}, {s(SRD_B,4)}, 0 offen", "c")
    A.vmem(f"buffer_load_dwordx4 {v(R+4,4)}, {v(VL16)}, {s(SRD_B,4)}, 0 offen offset:1024", "c")
    f16_src_voffset(A, R+8, VL, 7680, R+9, R+10)
    A(f"s_lshl_b32 s25, {s(SSTRIP)}, 5")
    for f in range(20):
        dma(A, R+8, SRD_A, "s25", None, stage + f*1024, f"m{f//5}")
        if f < 19: A(f"s_add_u32 s25, s25, {32*7680}")

def mod_finish(A, stage, silu, R):
    F, T = R+12, R+28
    A.vm_wait("c")
    for r in range(8):
        unpack_lo(A, F+2*r, R+r); unpack_hi(A, F+2*r+1, R+r)
    A("s_mov_b32 s25, 0xbfb8aa3b")
    for i in range(16): A(f"v_mul_f32 {v(T+i)}, s25, {v(F+i)}")
    for i in range(16): A(f"v_exp_f32 {v(T+i)}, {v(T+i)}")
    for i in range(16): A(f"v_add_f32 {v(T+i)}, 1.0, {v(T+i)}")
    for i in range(16): A(f"v_rcp_f32 {v(T+i)}, {v(T+i)}")
    for i in range(16): A(f"v_mul_f32 {v(F+i)}, {v(F+i)}, {v(T+i)}")
    for r in range(8): A(f"v_cvt_pk_bf16_f32 {v(R+r)}, {v(F+2*r)}, {v(F+2*r+1)}")
    A(f"v_add_u32 {v(R+8)}, {silu}, {v(VL16)}")
    A(f"ds_write_b128 {v(R+8)}, {v(R,4)}\nds_write_b128 {v(R+8)}, {v(R+4,4)} offset:1024")
    A(f"v_lshrrev_b32 {v(R+9)}, 4, {v(VL)}\nv_lshlrev_b32 {v(R+9)}, 4, {v(R+9)}\nv_add_u32 {v(R+9)}, {silu}, {v(R+9)}")
    A(f"v_lshlrev_b32 {v(R+10)}, 3, {v(VL)}\nv_add_u32 {v(R+10)}, {stage}, {v(R+10)}")
    A("s_waitcnt lgkmcnt(0)")
    B, W, ACC = R+12, R+52, R
    def reads(q):
        o = 20*(q & 1)
        for f in range(5): A(f"ds_read_b128 {v(B+o+4*f,4)}, {v(R+9)} offset:{(5*q+f)*64}")
        A.vm_wait(f"m{q}")
        for f in range(5):
            A(f"ds_read_b64_tr_b16 {v(W+o+4*f,2)}, {v(R+10)} offset:{(5*q+f)*1024}")
            A(f"ds_read_b64_tr_b16 {v(W+o+4*f+2,2)}, {v(R+10)} offset:{(5*q+f)*1024+512}")
    reads(0)
    for q in range(4):
        if q < 3: reads(q+1)
        A(f"s_waitcnt lgkmcnt({15 if q < 3 else 0})")
        o = 20*(q & 1)
        for f in range(5):
            A(f"v_mfma_f32_16x16x32_bf16 {v(ACC,4)}, {v(W+o+4*f,4)}, {v(B+o+4*f,4)}, {'0' if q == 0 and f == 0 else v(ACC,4)}")
    P = R+4
    A(f"v_cvt_pk_bf16_f32 {v(P)}, {v(ACC)}, {v(ACC+1)}\nv_cvt_pk_bf16_f32 {v(P+2)}, {v(ACC+2)}, {v(ACC+3)}")
    L = A.newlabel("noone")
    A(f"s_mul_i32 s25, {s(SSTRIP)}, 1639\ns_lshr_b32 s25, s25, 16\ns_cmp_eq_u32 s25, 1\ns_cselect_b32 s29, 1, 0\ns_cmp_eq_u32 s25, 4\ns_cselect_b32 s29, 1, s29")
    A(f"s_cmp_eq_u32 s29, 0\ns_cbranch_scc1 {L}")
    for q in (0, 2):
        unpack_lo(A, ACC, P+q); unpack_hi(A, ACC+1, P+q)
        A(f"v_add_f32 {v(ACC)}, 1.0, {v(ACC)}\nv_add_f32 {v(ACC+1)}, 1.0, {v(ACC+1)}\nv_cvt_pk_bf16_f32 {v(P+q)}, {v(ACC)}, {v(ACC+1)}")
    A.label(L)
    A(f"v_mov_b32 {v(P+1)}, {s(STAG)}\nv_mov_b32 {v(P+3)}, {s(STAG)}")
    A(f"s_lshl_b32 s25, {s(SSTRIP)}, 7\ns_add_u32 s25, s25, {SY_MODG}\nv_and_b32 {v(R+9)}, 48, {v(VL)}")
    A("s_mov_b32 exec_lo, 0x10001\ns_mov_b32 exec_hi, 0x10001")
    A.vmem(f"buffer_store_dwordx4 {v(P,4)}, {v(R+9)}, {s(SRD_WS,4)}, s25 offen{SC}", "pub")
    A("s_mov_b64 exec, -1")

def set_exec(A, ex):
    m = int(ex, 16)
    A(f"s_mov_b32 exec_lo, {hex(m & 0xffffffff)}\ns_mov_b32 exec_hi, {hex(m >> 32)}")

def poll_granules(A, loads, scnt):
    L = A.newlabel("gpoll"); Ld = A.newlabel("gdone")
    A(f"s_mov_b32 {s(scnt)}, {SPIN}")
    A.label(L)
    for (d, va, so, ex, imm) in loads:
        if ex: set_exec(A, ex)
        A(f"buffer_load_dwordx4 {v(d,4)}, {v(va)}, {s(SRD_WS,4)}, {so} offen offset:{imm}{SC}")
        if ex: A("s_mov_b64 exec, -1")
    A("s_waitcnt vmcnt(0)\ns_mov_b64 s[30:31], 0")
    for (d, va, so, ex, imm) in loads:
        if ex: set_exec(A, ex)
        for q in (1, 3):
            A(f"v_cmp_ne_u32 vcc, {s(STAG)}, {v(d+q)}\ns_or_b64 s[30:31], s[30:31], vcc")
        if ex: A("s_mov_b64 exec, -1")
    A(f"s_cmp_eq_u64 s[30:31], 0\ns_cbranch_scc1 {Ld}")
    A(f"s_sleep 2\ns_sub_u32 {s(scnt)}, {s(scnt)}, 1\ns_cmp_lg_u32 {s(scnt)}, 0\ns_cbranch_scc1 {L}")
    A.label(Ld)
    A.vm_reset()

X, XN, MS, AF, QACC, KVACC, ONES, QADR = 16, 56, 136, 168, 216, 236, 244, 248
T0, T1, T2, T3, VTR, VTK, VSRC = 4, 5, 6, 7, 8, 9, 10

def front(A):
    Lnm, Lw47, Lj1 = A.newlabel("nomod"), A.newlabel("w47"), A.newlabel("j1")
    A.vm_reset()
    A(f"s_and_b32 s26, {s(SW)}, 3\ns_lshr_b32 s27, {s(SW)}, 2")
    A(f"v_and_b32 {v(T0)}, 15, {v(VL)}\nv_mul_u32_u24 {v(T0)}, 1280, {v(T0)}\nv_lshrrev_b32 {v(T1)}, 4, {v(VL)}\nv_lshl_add_u32 {v(T0)}, {v(T1)}, 4, {v(T0)}")
    A(f"s_lshl_b32 s28, {s(STG)}, 2\ns_add_u32 s28, s28, s26\ns_mul_i32 s28, s28, 20480\ns_mul_i32 s29, s27, 640\ns_add_u32 s28, s28, s29")
    A(f"s_cmp_lg_u32 {s(SW)}, 0\ns_cbranch_scc1 {Lnm}\ns_cmp_ge_u32 {s(SM)}, 20\ns_cbranch_scc1 {Lnm}")
    srd_from_kernarg(A, SRD_A, "wmod"); srd_from_kernarg(A, SRD_B, "c")
    A("s_waitcnt lgkmcnt(0)")
    epoch_to_tag(A)
    mod_issue(A, L_MSTAGE, XN)
    for ks in range(10): A.vmem(f"buffer_load_dwordx4 {v(X+4*ks,4)}, {v(T0)}, {s(SRD_X,4)}, s28 offen offset:{64*ks}", "x")
    A.stamp(12)
    mod_finish(A, L_MSTAGE, L_SILU, XN)
    A.stamp(13)
    A(f"s_branch {Lj1}")
    A.label(Lnm)
    A.vm_reset()
    for ks in range(10): A.vmem(f"buffer_load_dwordx4 {v(X+4*ks,4)}, {v(T0)}, {s(SRD_X,4)}, s28 offen offset:{64*ks}", "x")
    A(f"s_cmp_ge_u32 {s(SW)}, 4\ns_cbranch_scc1 {Lw47}")
    A("s_waitcnt lgkmcnt(0)")
    epoch_to_tag(A)
    A.label(Lj1)
    A("s_waitcnt vmcnt(1)")
    Lst = A.newlabel("stats")
    A(f"s_cmp_ge_u32 {s(SM)}, 20\ns_cselect_b32 s29, 1, {s(SW)}\ns_cmp_eq_u32 s29, 0\ns_cbranch_scc1 {Lst}\ns_waitcnt vmcnt(0)")
    A(f"s_branch {Lst}")
    A.label(Lw47)
    A(f"s_and_b32 s29, {s(SNG)}, 1\ns_lshl_b32 s29, s29, 3\ns_add_u32 s29, s29, {KA['wk']}")
    A(f"s_load_dwordx2 {s(SRD_B,2)}, s[0:1], s29\ns_mov_b32 {s(SRD_B+2)}, {NBYTES['wk']}\ns_mov_b32 {s(SRD_B+3)}, 0x20000")
    srd_from_kernarg(A, SRD_A, "wq")
    f16_src_voffset(A, VSRC, VL, 1280, T1, T2)
    A("s_waitcnt lgkmcnt(0)")
    epoch_to_tag(A)
    publish_xid(A, 28, T1, T2)
    A(f"s_mul_i32 s29, {s(SW4)}, 6144\ns_add_u32 s30, s29, {L_WKV}")
    A(f"s_mov_b32 m0, s30")
    for q in range(4): dma(A, VL16, SRD_B, "s29", None, 0, "wkv", imm=1024*q, set_m0=False)
    A("s_add_u32 s29, s29, 4096\ns_add_u32 m0, s30, 4096")
    for q in range(2): dma(A, VL16, SRD_B, "s29", None, 0, "wkv", imm=1024*q, set_m0=False)
    A(f"s_mov_b32 s29, 24576\ns_mov_b32 m0, {L_WKV + 24576}")
    dma(A, VL16, SRD_B, "s29", None, 0, "wkv", set_m0=False)
    A(f"s_mul_i32 s31, {s(SW4)}, {5*32*1280}\ns_mul_i32 s29, {s(SNG)}, 160\ns_add_u32 s31, s31, s29\ns_mul_i32 s45, {s(SW4)}, 25600")
    def wq_dma(f):
        if f and f % 5 == 0: A(f"s_add_u32 s31, s31, {32*1280 - 128}")
        elif f: A("s_add_u32 s31, s31, 32")
        dma(A, VSRC, SRD_A, "s31", 45, L_WQ + f*1024, "wq")
    NQ1 = OPT["nq1"]
    for f in range(NQ1): wq_dma(f)
    A.vm_wait("x")
    A.label(Lst)
    A.stamp(5)
    for r in range(4): A(f"v_mov_b32 {v(ONES+r)}, 0x3f803f80")
    S1, S2 = KVACC, KVACC+4
    for ks in range(10):
        A(f"v_mfma_f32_16x16x32_bf16 {v(S1,4)}, {v(ONES,4)}, {v(X+4*ks,4)}, {'0' if ks == 0 else v(S1,4)}")
        A(f"v_mfma_f32_16x16x32_bf16 {v(S2,4)}, {v(X+4*ks,4)}, {v(X+4*ks,4)}, {'0' if ks == 0 else v(S2,4)}")
    for r in range(40):
        unpack_lo(A, XN+2*r, X+r); unpack_hi(A, XN+2*r+1, X+r)
    A(f"v_and_b32 {v(T0)}, 3, {v(VL)}")
    for r in range(1, 4): A(f"v_cmp_eq_u32 vcc, {r}, {v(T0)}\nv_cndmask_b32 {v(S2)}, {v(S2)}, {v(S2+r)}, vcc")
    A(f"v_mov_b32 {v(S1+1)}, {v(S2)}")
    A(f"v_and_b32 {v(T1)}, 15, {v(VL)}\nv_lshlrev_b32 {v(T2)}, 3, {v(T1)}\ns_lshl_b32 s28, {s(SW)}, 7\ns_add_u32 s28, s28, {L_LNX}\nv_add_u32 {v(T3)}, s28, {v(T2)}")
    A(f"v_lshrrev_b32 {v(T1)}, 2, {v(T1)}\nv_lshrrev_b32 {v(T0)}, 4, {v(VL)}\nv_cmp_eq_u32 vcc, {v(T0)}, {v(T1)}")
    A("s_and_saveexec_b64 s[32:33], vcc")
    A(f"ds_write_b64 {v(T3)}, {v(S1,2)}")
    A("s_mov_b64 exec, -1")
    A(f"s_lshl_b32 s28, s26, 7\ns_add_u32 s28, s28, {L_LNX}\nv_add_u32 {v(T2)}, s28, {v(T2)}")
    A("s_waitcnt lgkmcnt(0)\ns_barrier")
    A(f"ds_read_b64 {v(S1,2)}, {v(T2)}\nds_read_b64 {v(S2,2)}, {v(T2)} offset:512\ns_waitcnt lgkmcnt(0)")
    A(f"v_add_f32 {v(S1)}, {v(S1)}, {v(S2)}\nv_add_f32 {v(S1+1)}, {v(S1+1)}, {v(S2+1)}")
    A(f"v_mul_f32 {v(S1)}, 0xbacccccd, {v(S1)}\nv_mul_f32 {v(S1+1)}, 0x3acccccd, {v(S1+1)}")
    A(f"v_fma_f32 {v(S1+1)}, -{v(S1)}, {v(S1)}, {v(S1+1)}\nv_max_f32 {v(S1+1)}, 0, {v(S1+1)}\nv_add_f32 {v(S1+1)}, 0x3727c5ac, {v(S1+1)}")
    A(f"v_rsq_f32 {v(S2)}, {v(S1+1)}\nv_mul_f32 {v(S2+2)}, {v(S1)}, {v(S2)}\nv_mov_b32 {v(S2+1)}, {v(S2)}\nv_mov_b32 {v(S2+3)}, {v(S2+2)}")
    Lp47, Lj2 = A.newlabel("p47"), A.newlabel("j2")
    def normalise(extra=None):
        for r in range(40):
            A(f"v_pk_fma_f32 {v(XN+2*r,2)}, {v(XN+2*r,2)}, {v(S2,2)}, {v(S2+2,2)}")
            if extra and r % 3 == 2: extra()
    keep = list(A.vm)
    A(f"s_cmp_ge_u32 {s(SW)}, 4\ns_cbranch_scc1 {Lp47}")
    normalise()
    A.stamp(6)
    A(f"v_lshrrev_b32 {v(T0)}, 2, {v(VL)}\nv_and_b32 {v(T1)}, 3, {v(VL)}\nv_lshlrev_b32 {v(T2)}, 7, {v(T0)}\nv_lshl_add_u32 {v(T2)}, {v(T1)}, 4, {v(T2)}")
    A(f"s_lshl_b32 s28, {s(SW)}, 11\ns_add_u32 s28, s28, {SY_MODG}\ns_lshl_b32 s29, {s(SW)}, 9\ns_add_u32 s29, s29, {SY_MODG + 64*128}")
    poll_granules(A, [(MS, T2, "s28", None, 0), (MS+4, T2, "s29", "0xffff", 0)], 25)
    A.stamp(7)
    for q, sbase, ex in ((0, 4, None), (4, 2, "0xffff")):
        A(f"s_lshl_b32 s28, {s(SW)}, {sbase}\ns_add_u32 s28, s28, {64 if q else 0}\nv_add_u32 {v(T2)}, s28, {v(T0)}")
        A(f"v_subrev_u32 {v(T3)}, 40, {v(T2)}\nv_cmp_gt_u32 vcc, 40, {v(T2)}\nv_cndmask_b32 {v(T2)}, {v(T3)}, {v(T2)}, vcc\nv_cndmask_b32 {v(T3)}, 0, 8, vcc")
        A(f"v_lshlrev_b32 {v(T2)}, 7, {v(T2)}\nv_lshl_add_u32 {v(T2)}, {v(T1)}, 5, {v(T2)}\nv_add_u32 {v(T2)}, {v(T2)}, {v(T3)}\nv_add_u32 {v(T2)}, {L_MODSA}, {v(T2)}")
        unpack_lo(A, MS+8, MS+q); unpack_hi(A, MS+9, MS+q); unpack_lo(A, MS+10, MS+q+2); unpack_hi(A, MS+11, MS+q+2)
        if ex: A(f"s_mov_b64 exec, {ex}")
        A(f"ds_write_b64 {v(T2)}, {v(MS+8,2)}\nds_write_b64 {v(T2)}, {v(MS+10,2)} offset:16")
        if ex: A("s_mov_b64 exec, -1")
    A(f"s_branch {Lj2}")
    A.label(Lp47)
    A.vm = keep
    st = dict(f=NQ1)
    def more():
        if st["f"] < 25: wq_dma(st["f"]); st["f"] += 1
    normalise(more)
    assert st["f"] == 25
    A.vm_wait("wkv")
    A.label(Lj2)
    attn.qaddr(A, QADR, (T0, T1, T2, T3, 11, 12))
    A(f"v_lshrrev_b32 {v(T0)}, 4, {v(VL)}\nv_lshlrev_b32 {v(T3)}, 6, {v(T0)}\ns_mul_i32 s28, s27, 2560\ns_add_u32 s28, s28, {L_MODSA}\nv_add_u32 {v(T3)}, s28, {v(T3)}")
    A(f"s_mul_i32 s28, s27, 51200\nv_lshl_add_u32 {v(VTR)}, {v(VL)}, 3, s28")
    A(f"v_lshlrev_b32 {v(T0)}, 3, {v(T0)}\nv_bfe_u32 {v(T1)}, {v(VL)}, 2, 2\nv_add_u32 {v(T0)}, {v(T0)}, {v(T1)}\nv_mul_u32_u24 {v(T0)}, 40, {v(T0)}")
    A(f"v_and_b32 {v(T1)}, 3, {v(VL)}\nv_lshl_add_u32 {v(T0)}, {v(T1)}, 3, {v(T0)}\ns_mul_i32 s28, s27, 12800\ns_add_u32 s28, s28, {L_WKV}\nv_add_u32 {v(VTK)}, s28, {v(T0)}")
    A("s_waitcnt lgkmcnt(0)\ns_barrier")
    A.stamp(8)
    def msread(p): A(f"ds_read_b128 {v(MS+4*(p%8),4)}, {v(T3)} offset:{(p//4)*256 + (p%4)*16}")
    for p in range(7): msread(p)
    for p in range(40):
        if p + 7 < 40: msread(p + 7)
        A(f"s_waitcnt lgkmcnt({min(7, 39-p)})")
        m = MS + 4*(p % 8)
        A(f"v_pk_fma_f32 {v(XN+2*p,2)}, {v(XN+2*p,2)}, {v(m,2)}, {v(m+2,2)}")
        if p: A(f"v_cvt_pk_bf16_f32 {v(X+p-1)}, {v(XN+2*p-2)}, {v(XN+2*p-1)}")
    A(f"v_cvt_pk_bf16_f32 {v(X+39)}, {v(XN+78)}, {v(XN+79)}")
    A.stamp(9)
    Lnokv, Lv, Lkvw = A.newlabel("nokv"), A.newlabel("vproj"), A.newlabel("kvw")
    A(f"s_lshr_b32 s28, {s(SNG)}, 1\ns_cmp_lg_u32 s28, s26\ns_cselect_b32 s38, 0, 1\ns_cbranch_scc1 {Lnokv}")
    def kvread(ks):
        for n in range(2):
            for ip in range(2):
                A(f"ds_read_b64_tr_b16 {v(AF+8*(ks%4)+4*n+2*ip,2)}, {v(VTK)} offset:{(32*ks+4*ip)*40+32*n}")
    def kvproj(swap):
        for ks in range(3): kvread(ks)
        for ks in range(10):
            if ks + 3 < 10: kvread(ks + 3)
            A(f"s_waitcnt lgkmcnt({4*min(3, 9-ks)})")
            for n in range(2):
                w, h = v(AF+8*(ks%4)+4*n, 4), v(X+4*ks, 4)
                a_, b_ = (h, w) if swap else (w, h)
                A(f"v_mfma_f32_16x16x32_bf16 {v(KVACC+4*n,4)}, {a_}, {b_}, {'0' if ks == 0 else v(KVACC+4*n,4)}")
    A(f"s_bitcmp1_b32 {s(SNG)}, 0\ns_cbranch_scc1 {Lv}")
    kvproj(False)
    A(f"s_branch {Lkvw}")
    A.label(Lv)
    kvproj(True)
    A.label(Lkvw)
    A(f"s_cmp_eq_u32 s27, 0\ns_cbranch_scc1 {Lnokv}")
    A(f"v_add_u32 {v(T0)}, {L_KVRED}, {v(VL16)}")
    A(f"ds_write_b128 {v(T0)}, {v(KVACC,4)}\nds_write_b128 {v(T0)}, {v(KVACC+4,4)} offset:1024")
    A.label(Lnokv)
    Lc = A.newlabel("barc")
    A(f"s_cmp_lt_u32 {s(SW)}, 4\ns_cbranch_scc1 {Lc}\ns_waitcnt vmcnt(0)")
    A.label(Lc)
    A("s_waitcnt lgkmcnt(0)\ns_barrier")
    A.stamp(10)
    Lq, Lvs, Lvd = A.newlabel("qproj"), A.newlabel("vstore"), A.newlabel("kvdone")
    A(f"s_sub_u32 s28, s38, s27\ns_cmp_lg_u32 s28, 1\ns_cselect_b32 s38, 0, 1\ns_cbranch_scc1 {Lq}")
    A(f"v_add_u32 {v(T0)}, {L_KVRED}, {v(VL16)}")
    A(f"ds_read_b128 {v(MS,4)}, {v(T0)}\nds_read_b128 {v(MS+4,4)}, {v(T0)} offset:1024")
    A(f"s_lshl_b32 s28, {s(STG)}, 3\ns_lshl_b32 s29, s26, 1\ns_add_u32 s28, s28, s29\ns_mul_i32 s28, s28, {OCT}\ns_add_u32 s28, s28, {WS_KV2}")
    A(f"v_lshrrev_b32 {v(T0)}, 4, {v(VL)}\nv_and_b32 {v(T1)}, 15, {v(VL)}\ns_waitcnt lgkmcnt(0)")
    for r in range(8): A(f"v_add_f32 {v(KVACC+r)}, {v(KVACC+r)}, {v(MS+r)}")
    for r in range(4): A(f"v_cvt_pk_bf16_f32 {v(MS+r)}, {v(KVACC+2*r)}, {v(KVACC+2*r+1)}")
    A(f"s_bitcmp1_b32 {s(SNG)}, 0\ns_cbranch_scc1 {Lvs}")
    A(f"v_lshrrev_b32 {v(T2)}, 3, {v(T1)}\nv_mul_u32_u24 {v(T2)}, {OCT}, {v(T2)}\nv_and_b32 {v(T1)}, 7, {v(T1)}")
    A(f"v_lshl_add_u32 {v(T3)}, {v(T1)}, 3, {v(T2)}\nv_lshl_add_u32 {v(T2)}, {v(T1)}, 4, {v(T2)}")
    A(f"v_lshrrev_b32 {v(T1)}, 1, {v(T0)}\nv_lshl_add_u32 {v(T2)}, {v(T1)}, 7, {v(T2)}\nv_and_b32 {v(T0)}, 1, {v(T0)}\nv_lshl_add_u32 {v(T2)}, {v(T0)}, 3, {v(T2)}")
    A(f"buffer_store_dwordx2 {v(MS,2)}, {v(T2)}, {s(SRD_WS,4)}, s28 offen{SC}")
    A("s_mov_b64 exec, 0xffff")
    A(f"buffer_store_dwordx2 {v(MS+2,2)}, {v(T3)}, {s(SRD_WS,4)}, s28 offen offset:256{SC}")
    A(f"s_mov_b64 exec, -1\ns_branch {Lvd}")
    A.label(Lvs)
    A(f"v_lshrrev_b32 {v(T2)}, 1, {v(T0)}\nv_mul_u32_u24 {v(T2)}, {OCT}, {v(T2)}\nv_lshl_add_u32 {v(T2)}, {v(T1)}, 4, {v(T2)}\nv_and_b32 {v(T0)}, 1, {v(T0)}\nv_lshl_add_u32 {v(T2)}, {v(T0)}, 3, {v(T2)}")
    A(f"v_mov_b32 {v(T3)}, 0x3f803f80\nv_cmp_eq_u32 vcc, 4, {v(T1)}\nv_cndmask_b32 {v(MS+2)}, {v(MS+2)}, {v(T3)}, vcc\nv_cndmask_b32 {v(MS+3)}, {v(MS+3)}, {v(T3)}, vcc")
    A(f"buffer_store_dwordx2 {v(MS,2)}, {v(T2)}, {s(SRD_WS,4)}, s28 offen offset:384{SC}")
    A("s_mov_b32 exec_lo, 0x1f001f\ns_mov_b32 exec_hi, 0x1f001f")
    A(f"buffer_store_dwordx2 {v(MS+2,2)}, {v(T2)}, {s(SRD_WS,4)}, s28 offen offset:640{SC}")
    A("s_mov_b64 exec, -1")
    A.label(Lvd)
    A.label(Lq)
    def qread(ks):
        for i in range(5):
            for ip in range(2):
                A(f"ds_read_b64_tr_b16 {v(AF+20*(ks&1)+4*i+2*ip,2)}, {v(VTR)} offset:{(5*ks+i)*1024+512*ip}")
    A(f"s_lshl_b32 s28, {s(STG)}, 3\ns_add_u32 s28, s28, {s(SNG)}\ns_lshl_b32 s28, s28, 7\ns_add_u32 s28, s28, {SY_FL1}")
    qread(0)
    for ks in range(10):
        if ks == OPT["flag_ks"]:
            L = A.newlabel("nofl1")
            A(f"s_cmp_eq_u32 s38, 0\ns_cbranch_scc1 {L}\ns_waitcnt vmcnt(0)")
            set_flag(A, "s28", T0, T1, local=False)
            A.label(L)
        for i in range(5):
            if ks + 1 < 10:
                for ip in range(2):
                    A(f"ds_read_b64_tr_b16 {v(AF+20*((ks+1)&1)+4*i+2*ip,2)}, {v(VTR)} offset:{(5*(ks+1)+i)*1024+512*ip}")
                A("s_waitcnt lgkmcnt(10)")
            else: A(f"s_waitcnt lgkmcnt({2*(4-i)})")
            A(f"v_mfma_f32_16x16x32_bf16 {v(QACC+4*i,4)}, {v(AF+20*(ks&1)+4*i,4)}, {v(X+4*ks,4)}, {'0' if ks == 0 else v(QACC+4*i,4)}")
    A.stamp(11)
    Llo, Le = A.newlabel("qlo"), A.newlabel("qe")
    A(f"s_mul_i32 s28, s26, 5120\ns_add_u32 s28, s28, {L_QRED}\nv_add_u32 {v(T0)}, s28, {v(VL16)}")
    A(f"s_cmp_lt_u32 {s(SW)}, 4\ns_cbranch_scc1 {Llo}")
    for i in range(5): A(f"ds_write_b128 {v(T0)}, {v(QACC+4*i,4)} offset:{1024*i}")
    A("s_waitcnt lgkmcnt(0)\ns_barrier")
    A(f"v_mov_b32 {v(T1)}, {L_FLAG}\nv_mov_b32 {v(T2)}, 0\nds_write_b32 {v(T1)}, {v(T2)}\nds_write_b32 {v(T1)}, {v(T2)} offset:16\ns_waitcnt lgkmcnt(0)")
    A(f"s_branch {Le}")
    A.label(Llo)
    A("s_barrier")
    for i in range(5): A(f"ds_read_b128 {v(AF+4*i,4)}, {v(T0)} offset:{1024*i}")
    for i in range(5):
        A(f"s_waitcnt lgkmcnt({4-i})")
        for r in range(4): A(f"v_add_f32 {v(QACC+4*i+r)}, {v(QACC+4*i+r)}, {v(AF+4*i+r)}")
    attn.qwrite(A, QACC, QADR, AF)
    A("s_waitcnt lgkmcnt(0)")
    A.label(Le)
    A("s_barrier")
    A.stamp(14)

def last_arriver(A, Lskip, t0, t1):
    A(f"v_mov_b32 {v(t0)}, {L_CNT}\nv_mov_b32 {v(t1)}, 1\ns_mov_b64 exec, 1\nds_add_rtn_u32 {v(t1)}, {v(t0)}, {v(t1)}\ns_mov_b64 exec, -1\ns_waitcnt lgkmcnt(0)")
    A(f"v_readfirstlane_b32 s25, {v(t1)}\ns_cmp_lg_u32 s25, 3\ns_cbranch_scc1 {Lskip}")

def side_job(A):
    Ldone, Lgu, Lnostrip = A.newlabel("sdone"), A.newlabel("sgu"), A.newlabel("snostrip")
    A(f"s_cmp_lt_u32 {s(SM)}, 20\ns_cbranch_scc1 {Lgu}\ns_cmp_ge_u32 {s(SM)}, 60\ns_cbranch_scc1 {Lgu}")
    R = 100
    A.vm_reset()
    A(f"s_cmp_lg_u32 {s(SW)}, 4\ns_cbranch_scc1 {Lnostrip}")
    srd_from_kernarg(A, SRD_A, "wmod"); srd_from_kernarg(A, SRD_B, "c")
    A("s_waitcnt lgkmcnt(0)")
    mod_issue(A, 45056, R)
    mod_finish(A, 45056, 65536, R)
    A.label(Lnostrip)
    A.vm_reset()
    A(f"s_sub_u32 s26, {s(SSTRIP)}, 80\ns_cmp_ge_u32 s26, 136\ns_cbranch_scc1 {Ldone}")
    A("s_lshr_b32 s27, s26, 1\ns_cmp_lt_u32 s27, 20")
    A(f"s_cselect_b32 s28, {KA['wo']}, {KA['wd']}")
    A(f"s_load_dwordx2 {s(SRD_A,2)}, s[0:1], s28")
    A(f"s_mov_b32 {s(SRD_A+2)}, {NBYTES['wd']}\ns_cselect_b32 {s(SRD_A+2)}, {NBYTES['wo']}, {s(SRD_A+2)}\ns_mov_b32 {s(SRD_A+3)}, 0x20000")
    A(f"s_mov_b32 s29, {WS_WD}\ns_cselect_b32 s29, {WS_WO}, s29\ns_cselect_b32 s30, 20, 48\ns_cselect_b32 s31, 0, 20")
    A("s_sub_u32 s31, s27, s31")
    A("s_mul_i32 s28, s31, 21846\ns_lshr_b32 s28, s28, 16\ns_mul_i32 s32, s28, 3\ns_sub_u32 s32, s31, s32\ns_lshl_b32 s32, s32, 4\ns_add_u32 s32, s32, s28")
    A("s_cmp_lt_u32 s27, 20\ns_cselect_b32 s32, s31, s32")
    A(f"s_and_b32 s28, s26, 1\ns_lshl_b32 s28, s28, 2\ns_add_u32 s28, s28, {s(SW4)}")
    A("s_mul_i32 s30, s30, s28\ns_add_u32 s30, s30, s32\ns_mul_i32 s30, s30, 5120\ns_add_u32 s30, s30, s29")
    A(f"s_mul_i32 s31, s31, {32*1280}\ns_mul_i32 s28, s28, 160\ns_add_u32 s31, s31, s28")
    A(f"s_mul_i32 s33, {s(SW4)}, 10240\nv_lshl_add_u32 v9, {v(VL)}, 3, s33")
    f16_src_voffset(A, 8, VL, 1280, 10, 11)
    A("s_waitcnt lgkmcnt(0)")
    for f in range(5):
        dma(A, 8, SRD_A, "s31", 33, f*1024, "w")
        if f < 4: A("s_add_u32 s31, s31, 32")
    A.vm_wait("w")
    for f in range(5):
        A(f"ds_read_b64_tr_b16 {v(20+4*f,2)}, v9 offset:{f*1024}\nds_read_b64_tr_b16 {v(22+4*f,2)}, v9 offset:{f*1024+512}")
    for f in range(5):
        A(f"s_waitcnt lgkmcnt({2*(4-f)})")
        if f == 4: A("s_add_u32 s30, s30, 4096")
        A(f"buffer_store_dwordx4 {v(20+4*f,4)}, {v(VL16)}, {s(SRD_WS,4)}, s30 offen offset:{(f%4)*1024}{SC}")
    A("s_waitcnt vmcnt(0)")
    last_arriver(A, Ldone, 10, 11)
    A(f"s_lshl_b32 s26, s26, 2\ns_add_u32 s26, s26, {SY_FLP + 96*4}")
    set_flag(A, "s26", 10, 11, local=False)
    A(f"s_branch {Ldone}")
    A.label(Lgu)
    A.vm_reset()
    A(f"s_sub_u32 s26, {s(SSTRIP)}, 160\ns_cmp_lt_u32 {s(SM)}, 20\ns_cselect_b32 s26, {s(SSTRIP)}, s26")
    srd_from_kernarg(A, SRD_A, "wg"); srd_from_kernarg(A, SRD_B, "wu")
    f16_src_voffset(A, 8, VL, 3072, 9, 10)
    A(f"s_mul_i32 s33, {s(SW4)}, 10240\ns_mul_i32 s31, {s(SW4)}, {160*3072}\ns_lshl_b32 s28, s26, 5\ns_add_u32 s31, s31, s28")
    A("s_waitcnt lgkmcnt(0)")
    for pp in range(5):
        dma(A, 8, SRD_A, "s31", 33, pp*2048, "w")
        dma(A, 8, SRD_B, "s31", 33, pp*2048+1024, "w")
        if pp < 4: A(f"s_add_u32 s31, s31, {32*3072}")
    A(f"v_bfe_u32 v5, {v(VL)}, 4, 1\nv_lshlrev_b32 v9, 10, v5")
    A(f"v_lshrrev_b32 v5, 5, {v(VL)}\nv_lshl_add_u32 v9, v5, 7, v9")
    A(f"v_bfe_u32 v5, {v(VL)}, 2, 2\nv_lshl_add_u32 v9, v5, 5, v9")
    A(f"v_and_b32 v5, 1, {v(VL)}\nv_lshl_add_u32 v9, v5, 4, v9")
    A(f"v_bfe_u32 v5, {v(VL)}, 1, 1\nv_lshl_add_u32 v9, v5, 3, v9")
    A("v_add_u32 v9, s33, v9")
    A("s_mul_i32 s29, s26, 10923\ns_lshr_b32 s29, s29, 16\ns_mul_i32 s30, s29, 6\ns_sub_u32 s30, s26, s30")
    A(f"s_mul_i32 s29, s29, {GU_BLOCK}\ns_add_u32 s29, s29, {WS_WGU}")
    A("s_lshr_b32 s31, s30, 1\ns_mul_i32 s31, s31, 81920\ns_and_b32 s28, s30, 1\ns_lshl_b32 s28, s28, 10\ns_add_u32 s31, s31, s28")
    A(f"s_mul_i32 s28, {s(SW4)}, 20480\ns_add_u32 s31, s31, s28\ns_add_u32 s31, s31, s29\ns_add_u32 s31, s31, 6144")
    A("s_lshl_b32 s30, s30, 10\ns_add_u32 s32, s30, s29")
    A.vm_wait("w")
    for ss in range(10):
        o = (ss >> 1)*2048 + (ss & 1)*256
        A(f"ds_read_b64_tr_b16 {v(20+4*ss,2)}, v9 offset:{o}\nds_read_b64_tr_b16 {v(22+4*ss,2)}, v9 offset:{o+512}")
        if ss % 5 == 4: A("s_waitcnt lgkmcnt(0)")
    for ss in range(10):
        A(f"buffer_store_dwordx4 {v(20+4*ss,4)}, {v(VL16)}, {s(SRD_WS,4)}, s31 offen offset:{(ss&1)*2048}{SC}")
        if ss & 1: A("s_add_u32 s31, s31, 4096")
    A(f"v_lshrrev_b32 v10, 2, {v(VL)}\nv_and_b32 v11, 3, {v(VL)}\nv_lshlrev_b32 v12, 7, v10\nv_lshl_add_u32 v12, v11, 4, v12")
    A(f"s_mul_i32 s28, {s(SW4)}, 1280\ns_add_u32 s28, s28, {SY_MODG + 120*128}\ns_add_u32 s29, s28, {40*128}")
    poll_granules(A, [(60, 12, "s28", "0xffffffffff", 0), (64, 12, "s29", "0xffffffffff", 0)], 25)
    CB = 40960
    A(f"s_mul_i32 s28, {s(SW4)}, 1024\ns_add_u32 s28, s28, {CB}\nv_lshl_add_u32 v12, {v(VL)}, 3, s28")
    A("v_mov_b32 v61, v62\nv_mov_b32 v65, v66\nds_write_b64 v12, v[60:61] offset:512\nds_write_b64 v12, v[64:65]")
    A(f"v_and_b32 v10, 1, {v(VL)}\nv_lshlrev_b32 v10, 9, v10\nv_lshrrev_b32 v11, 5, {v(VL)}\nv_lshl_add_u32 v10, v11, 4, v10\nv_add_u32 v10, s28, v10\ns_waitcnt lgkmcnt(0)")
    for ss in range(10): A(f"ds_read_b128 {v(60+4*ss,4)}, v10 offset:{32*ss}")
    for ss in range(10):
        A(f"s_waitcnt lgkmcnt({9-ss})")
        A(f"v_mfma_f32_32x32x16_bf16 v[100:115], {v(20+4*ss,4)}, {v(60+4*ss,4)}, {'0' if ss == 0 else 'v[100:115]'}")
    RB = 45056
    A(f"v_and_b32 v4, 31, {v(VL)}\nv_lshrrev_b32 v5, 5, {v(VL)}\nv_lshlrev_b32 v5, 4, v5\nv_lshl_add_u32 v5, v4, 7, v5")
    A(f"s_lshl_b32 s28, {s(SW4)}, 8\ns_add_u32 s28, s28, {RB}\nv_add_u32 v5, s28, v5")
    A("s_mov_b32 exec_lo, 3\ns_mov_b32 exec_hi, 3")
    for q in range(4): A(f"ds_write_b128 v5, {v(100+4*q,4)} offset:{32*q}")
    A("s_mov_b64 exec, -1\ns_waitcnt vmcnt(0) lgkmcnt(0)")
    last_arriver(A, Ldone, 10, 11)
    A("v_lshlrev_b32 v5, 2, v4")
    for w in range(4):
        A(f"ds_read_b32 {v(20+w)}, v5 offset:{RB+256*w}\nds_read_b32 {v(24+w)}, v5 offset:{RB+256*w+128}")
    A("s_waitcnt lgkmcnt(0)")
    for b in (20, 24):
        A(f"v_add_f32 {v(b)}, {v(b)}, {v(b+1)}\nv_add_f32 {v(b+2)}, {v(b+2)}, {v(b+3)}\nv_add_f32 {v(b)}, {v(b)}, {v(b+2)}")
    A("v_cvt_pk_bf16_f32 v28, v20, v20\nv_cvt_pk_bf16_f32 v30, v24, v24")
    A("v_and_b32 v21, 0xffff0000, v28\nv_sub_f32 v21, v20, v21\nv_and_b32 v25, 0xffff0000, v30\nv_sub_f32 v25, v24, v25")
    A("v_cvt_pk_bf16_f32 v29, v21, v24\nv_cvt_pk_bf16_f32 v30, v24, v25\nv_mov_b32 v31, 0")
    A(f"v_cmp_gt_u32 vcc, 32, {v(VL)}")
    for r in (28, 29, 30): A(f"v_cndmask_b32 {v(r)}, 0, {v(r)}, vcc")
    A(f"buffer_store_dwordx4 v[28:31], {v(VL16)}, {s(SRD_WS,4)}, s32 offen{SC}\ns_waitcnt vmcnt(0)")
    A(f"s_lshl_b32 s26, s26, 2\ns_add_u32 s26, s26, {SY_FLP}")
    set_flag(A, "s26", 10, 11, local=False)
    A.label(Ldone)
```

```python
from fcommon import *
import attn, post, front

NAME = "adaLN_cond__grouped_kv_mqa__glu_gated_geglu__prompt_kernel"; GRID = 256; BLOCK = 512; LDS = LDS_ALL
def gen():
    A = Asm()
    A(f"s_cmp_ge_u32 s2, {GRID}\ns_cbranch_scc1 Lf_end")
    load_ptr(A, "ws", 4); load_ptr(A, "x", 12)
    wave_id(A, SW, 1)
    ids(A); front.job_ids(A)
    A(f"v_and_b32 v1, 63, v0\nv_lshlrev_b32 v2, 4, v1\ns_sub_u32 s43, {s(SW)}, 4")
    A("s_waitcnt lgkmcnt(0)")
    read_epoch(A, 4, 6)
    make_srd(A, SRD_WS, 4, WS_TOP); make_srd(A, SRD_X, 12, NBYTES["x"])
    make_srd(A, front.SRD_A, 12, NBYTES["x"]); make_srd(A, front.SRD_B, 12, NBYTES["x"])
    A("v_mov_b32 v10, 0")
    A.phase = "front"
    front.front(A)
    A(f"s_cmp_lt_u32 {s(SW)}, 4\ns_cbranch_scc1 Lf_attn")
    front.side_job(A)
    A.stamp(15)
    A.label("Lf_attn")
    A.phase = "attn"
    make_srd(A, attn.SRD_KV, 4, 64*KVT, add=WS_KV2)
    S = post.Stream(A, post.VL16, 43)
    def side_wo(A):
        T = attn.TMP
        A(f"s_lshr_b32 s28, {s(SNG)}, 2\ns_mul_i32 s29, {s(SFB)}, 6\nv_lshlrev_b32 {v(T)}, 1, {v(attn.VL)}\nv_add_u32 {v(T)}, s28, {v(T)}\nv_add_u32 {v(T)}, 96, {v(T)}")
        A(f"s_sub_u32 s29, s29, 20\nv_add_u32 {v(T+1)}, s29, {v(attn.VL)}\nv_cmp_gt_u32 vcc, 20, {v(attn.VL)}\nv_cndmask_b32 {v(T)}, {v(T+1)}, {v(T)}, vcc\nv_lshlrev_b32 {v(T)}, 2, {v(T)}")
        A(f"s_mov_b32 s28, {SY_FLP}")
        poll_flags(A, 26, T, T+1, "s28", 29)
        S.init(); S.issue(0); S.issue(1)
    attn.attention(A, side={7: side_wo})
    A.phase = "post"
    post.lane_consts2(A)
    A(f"s_cmp_lt_u32 {s(SW)}, 4\ns_cbranch_scc1 Lf_comp")
    A.vm_reset()
    for n in (2, 3, 4): S.issue(n)
    post.loader_tail(A, S, 5)
    A("s_endpgm")
    A.label("Lf_comp")
    front.srd_from_kernarg(A, SRD_OUT, "out")
    post.p3(A); post.p4(A); post.p5(A)
    post.update_epoch(A, 7, 8)
    A.label("Lf_end")
    A("s_endpgm")
    return A, 256, 256
```

```python
from common import *

STAMPS = False
def _st(A, i):
    if STAMPS: A.stamp(i)

def loader(A, KS, R, srd, s_w, s_wave4, vlane16, stmp, lds0=0, after_first=None, before=None):
    C = KS // 4
    R = R or C
    A.vm_reset()
    A(f"s_mul_i32 {s(stmp)}, {s(s_wave4)}, 5120")
    A(f"s_add_u32 {s(stmp+1)}, {s(stmp)}, {s(s_w)}")
    if lds0: A(f"s_add_u32 {s(stmp)}, {s(stmp)}, {lds0}")
    def issue(c):
        slot = (c % R) * 20480
        dma(A, vlane16, srd, s(stmp+1), stmp, slot, f"c{c}")
        for i in range(1, 4): dma(A, vlane16, srd, s(stmp+1), stmp, slot, f"c{c}", imm=1024*i, set_m0=False)
        A(f"s_add_u32 {s(stmp+2)}, {s(stmp+1)}, 4096")
        dma(A, vlane16, srd, s(stmp+2), stmp, slot+4096, f"c{c}")
        if c + 1 < C: A(f"s_add_u32 {s(stmp+1)}, {s(stmp+1)}, 20480")
    if before: before(A)
    for c in range(min(R, C)): issue(c)
    if after_first: after_first(A)
    _st(A, 0)
    for c in range(C):
        A.vm_wait(f"c{c}")
        if c in (0, 1, 2, 4, 8): _st(A, {0: 1, 1: 2, 2: 3, 4: 4, 8: 5}[c])
        A("s_barrier")
        if c >= 1 and c - 1 + R < C: issue(c - 1 + R)

def compute(A, KS, R, srd, s_b, vlane16, VB, NB, VA, VACC, vld, lds0=0, after_b=None):
    C = KS // 4
    R = R or C
    A.vm_reset()
    def bload(ks):
        if ks % 4 == 0 and ks: A(f"s_add_u32 {s(s_b)}, {s(s_b)}, 4096")
        A.vmem(f"buffer_load_dwordx4 {v(VB+4*(ks%NB),4)}, {v(vlane16)}, {s(srd,4)}, {s(s_b)} offen offset:{(ks%4)*1024}", f"b{ks}")
    for ks in range(min(NB, KS)): bload(ks)
    for j in range(3):
        A(f"v_add_u32 {v(vld+j)}, {lds0 + j*61440}, {v(vlane16)}")
    if after_b: after_b(A)
    def aread(ks):
        off = ((ks // 4) % R) * 20480 + (ks % 4) * 5120
        for i in range(5):
            o = off + 1024*i
            A(f"ds_read_b128 {v(VA+20*(ks&1)+4*i,4)}, {v(vld + o//61440)} offset:{o%61440}")
    _st(A, 0)
    A("s_barrier")
    _st(A, 1)
    aread(0)
    for ks in range(KS):
        if ks + 1 < KS:
            if (ks + 1) % 4 == 0:
                A("s_waitcnt lgkmcnt(0)\ns_barrier")
                if (ks+1) in (4, 8, 16, 32): _st(A, {4: 2, 8: 3, 16: 4, 32: 5}[ks+1])
            aread(ks + 1)
        first = True
        for i in range(5):
            lg = f"lgkmcnt({(5 if ks+1 < KS else 0) + 4 - i})"
            if (ks + 1) % 4 == 0 and ks + 1 < KS: lg = ""
            if first:
                A.vm_wait(f"b{ks}", lg); first = False
            elif lg: A(f"s_waitcnt {lg}")
            A(f"v_mfma_f32_16x16x32_bf16 {v(VACC+4*i,4)}, {v(VA+20*(ks&1)+4*i,4)}, {v(VB+4*(ks%NB),4)}, {'0' if ks == 0 else v(VACC+4*i,4)}")
        if ks + NB < KS: bload(ks + NB)
    _st(A, 6)

def tile_ids(A, s_tg, s_ng):
    A(f"s_and_b32 {s(s_tg)}, s2, 7\ns_lshl_b32 {s(s_tg)}, {s(s_tg)}, 2\ns_lshr_b32 {s(s_ng)}, s2, 6\ns_add_u32 {s(s_tg)}, {s(s_tg)}, {s(s_ng)}")
    A(f"s_bfe_u32 {s(s_ng)}, s2, 0x30003")
```

```python
from common import *
import g64, struct

NAME = "gateup_kernel"
GRID = 256; BLOCK = 512
RING0 = 6144
LDS = RING0 + 7*20480

def fbits(x): return "0x%08x" % struct.unpack("<I", struct.pack("<f", x))[0]
C1 = -2.0 * 1.4426950408889634 * 0.7978845608028654
C2 = C1 * 0.044715

def gen():
    A = Asm()
    SW, STB, SFB = 3, 20, 21
    SRD_WS = 8
    VL16, VB1, VB2, VST = 1, 2, 3, 0
    XB, K1, K2, IR2 = 4, 8, 9, 10
    T = 11
    VA, ACC = 16, 32
    A(f"s_cmp_ge_u32 s2, {GRID}")
    A("s_cbranch_scc1 Lk4_end")
    load_ptr(A, "ws", 4)
    wave_id(A, SW, 1)
    A(f"v_and_b32 v0, 63, v0\nv_lshlrev_b32 {v(VL16)}, 4, v0")
    A(f"s_and_b32 {s(STB)}, s2, 7\ns_lshl_b32 {s(STB)}, {s(STB)}, 1\ns_lshr_b32 {s(SFB)}, s2, 7\ns_add_u32 {s(STB)}, {s(STB)}, {s(SFB)}")
    A(f"s_bfe_u32 {s(SFB)}, s2, 0x40003")
    A("s_waitcnt lgkmcnt(0)")
    make_srd(A, SRD_WS, 4, WS_END)
    A(f"s_cmp_lt_u32 {s(SW)}, 4")
    A("s_cbranch_scc1 Lk4_comp")
    A(f"s_sub_u32 s22, {s(SW)}, 4\ns_mul_i32 s23, {s(SFB)}, {GU_BLOCK}\ns_add_u32 s28, s23, {WS_WGU}\ns_add_u32 s23, s28, {RING0}")
    def extra(A):
        A("s_min_u32 s29, s22, 2\ns_lshl_b32 s29, s29, 11\ns_add_u32 s28, s28, s29")
        dma(A, VL16, SRD_WS, "s28", 29, 0, "c0")
        dma(A, VL16, SRD_WS, "s28", 29, 0, "c0", imm=1024, set_m0=False)
    g64.loader(A, 48, 7, SRD_WS, 23, 22, VL16, 24, lds0=RING0, before=extra)
    A("s_endpgm")
    A.label("Lk4_comp")
    A.vm_reset()
    A(f"s_lshl_b32 s22, {s(STB)}, 2\ns_add_u32 s22, s22, {s(SW)}")
    ST = ACC + 32
    A(f"v_and_b32 {v(T)}, 31, v0\nv_lshlrev_b32 {v(T+1)}, 6, {v(T)}")
    A(f"s_lshl_b32 s23, s22, 11\ns_add_u32 s23, s23, {WS_STATS}")
    for q in range(4):
        A.vmem(f"buffer_load_dwordx4 {v(ST+4*q,4)}, {v(T+1)}, {s(SRD_WS,4)}, s23 offen offset:{16*q}", "st")
    A(f"s_mul_i32 s23, s22, 40960\ns_add_u32 s23, s23, {WS_Y}")
    for k in range(40):
        if k and k % 4 == 0: A("s_add_u32 s23, s23, 4096")
        A.vmem(f"buffer_load_dwordx4 {a(4*k,4)}, {v(VL16)}, {s(SRD_WS,4)}, s23 offen offset:{(k%4)*1024}", f"x{k}")
    A(f"v_add_u32 {v(VB1)}, 61440, {v(VL16)}\nv_add_u32 {v(VB2)}, 122880, {v(VL16)}")
    A(f"v_cmp_gt_u32 s[30:31], 32, v0")
    A(f"v_lshrrev_b32 {v(T+1)}, 4, {v(T)}\nv_mul_u32_u24 {v(T+1)}, 49152, {v(T+1)}\nv_and_b32 {v(T)}, 15, {v(T)}\nv_lshl_add_u32 {v(T+1)}, {v(T)}, 4, {v(T+1)}")
    A(f"v_lshrrev_b32 {v(T)}, 5, v0\nv_lshl_add_u32 {v(VST)}, {v(T)}, 8, {v(T+1)}")
    A(f"s_mul_i32 s24, s22, 98304\ns_mul_i32 s25, {s(SFB)}, 3072\ns_add_u32 s24, s24, s25\ns_add_u32 s24, s24, {WS_HM}")
    A.vm_wait("st")
    for q in range(2):
        A(f"v_add_f32 {v(ST+q)}, {v(ST+q)}, {v(ST+2+q)}")
        for z in range(1, 4):
            A(f"v_add_f32 {v(ST+4*z+q)}, {v(ST+4*z+q)}, {v(ST+4*z+2+q)}")
        A(f"v_add_f32 {v(ST+q)}, {v(ST+q)}, {v(ST+4+q)}\nv_add_f32 {v(ST+8+q)}, {v(ST+8+q)}, {v(ST+12+q)}\nv_add_f32 {v(ST+q)}, {v(ST+q)}, {v(ST+8+q)}")
    MU, VAR, RR, RHO = ST, ST+1, ST+2, ST+3
    A(f"v_mul_f32 {v(MU)}, 0xbacccccd, {v(MU)}")
    A(f"v_mul_f32 {v(VAR)}, 0x3acccccd, {v(VAR)}")
    A(f"v_fma_f32 {v(VAR)}, -{v(MU)}, {v(MU)}, {v(VAR)}\nv_max_f32 {v(VAR)}, 0, {v(VAR)}\nv_add_f32 {v(IR2)}, 0x3727c5ac, {v(VAR)}")
    A(f"v_rsq_f32 {v(RR)}, {v(IR2)}\nv_sqrt_f32 {v(RHO)}, {v(IR2)}")
    A(f"v_mul_f32 {v(K1)}, {fbits(C1)}, {v(RR)}\nv_mul_f32 {v(K2)}, {v(RR)}, {v(RR)}\nv_mul_f32 {v(K2)}, {v(K2)}, {v(RR)}\nv_mul_f32 {v(K2)}, {fbits(C2)}, {v(K2)}")
    A(f"v_cvt_pk_bf16_f32 {v(ST+4)}, {v(MU)}, {v(RHO)}")
    A(f"v_lshlrev_b32 {v(ST+5)}, 16, {v(ST+4)}\nv_and_b32 {v(ST+6)}, 0xffff0000, {v(ST+4)}")
    A(f"v_sub_f32 {v(ST+5)}, {v(MU)}, {v(ST+5)}\nv_sub_f32 {v(ST+6)}, {v(RHO)}, {v(ST+6)}")
    A(f"v_cvt_pk_bf16_f32 {v(XB)}, {v(MU)}, {v(ST+5)}")
    A(f"v_cvt_pk_bf16_f32 {v(XB+2)}, {v(ST+6)}, {v(RHO)}")
    A(f"v_cndmask_b32 {v(XB)}, 0, {v(XB)}, s[30:31]\nv_cndmask_b32 {v(XB+1)}, 0, {v(ST+4)}, s[30:31]\nv_cndmask_b32 {v(XB+2)}, 0, {v(XB+2)}, s[30:31]\nv_mov_b32 {v(XB+3)}, 0")

    seq = [(p, k) for p in range(3) for k in range(41)]
    def lds_off(p, k, i):
        if k == 40: return (2*p + i) * 1024
        gs = 40*p + k
        return RING0 + ((gs // 10) % 7) * 20480 + ((gs % 10)*2 + i) * 1024
    def aread(n):
        p, k = seq[n]
        out = []
        for i in range(2):
            o = lds_off(p, k, i)
            out.append(f"ds_read_b128 {v(VA+8*(n&1)+4*i,4)}, {v((VL16, VB1, VB2)[o//61440])} offset:{o%61440}")
        return out
    def epilogue(p):
        ops = []
        for i in range(2):
            acc = ACC + 32*(p & 1) + 16*i
            for e0 in range(0, 8, 2):
                E = (e0, e0+1)
                for j, e in enumerate(E): ops.append(f"v_mul_f32 {v(T+j)}, {v(acc+e)}, {v(acc+e)}")
                for j, e in enumerate(E): ops.append(f"v_fma_f32 {v(T+j)}, {v(T+j)}, {v(K2)}, {v(K1)}")
                for j, e in enumerate(E): ops.append(f"v_mul_f32 {v(T+j)}, {v(T+j)}, {v(acc+e)}")
                for j, e in enumerate(E): ops.append(f"v_exp_f32 {v(T+j)}, {v(T+j)}")
                ops.append(f"v_mul_f32 {v(acc+8+e0)}, {v(acc+8+e0)}, {v(acc+e0)}")
                for j, e in enumerate(E): ops.append(f"v_fma_f32 {v(T+j)}, {v(T+j)}, {v(IR2)}, {v(IR2)}")
                for j, e in enumerate(E): ops.append(f"v_rcp_f32 {v(T+j)}, {v(T+j)}")
                ops.append(f"v_mul_f32 {v(acc+9+e0)}, {v(acc+9+e0)}, {v(acc+1+e0)}")
                for j, e in enumerate(E): ops.append(f"v_mul_f32 {v(acc+8+e)}, {v(acc+8+e)}, {v(T+j)}")
                ops.append(f"v_cvt_pk_bf16_f32 {v(acc+e0//2)}, {v(acc+8+e0)}, {v(acc+9+e0)}")
            ops.append(("store", f"buffer_store_dwordx4 {v(acc,4)}, {v(VST)}, {s(SRD_WS,4)}, s24 offen offset:{1024*p+512*i}"))
        return ops
    def emit(op):
        if isinstance(op, tuple): A.vmem(op[1], "out")
        else: A(op)
    A.stamp(0)
    A("s_barrier")
    A.stamp(1)
    for r in aread(0): A(r)
    pend = []
    for n, (p, k) in enumerate(seq):
        if k == 0 and p > 0: pend = epilogue(p - 1); A.stamp(3 + p)
        if p == 0 and k in (10, 20): A.stamp(1 + k//10)
        boundary = False
        if n + 1 < len(seq):
            p2, k2 = seq[n+1]
            if k2 != 40 and (40*p2 + k2) % 10 == 0:
                A("s_waitcnt lgkmcnt(0)\ns_barrier"); boundary = True
            rd = aread(n + 1)
        else: rd = []
        acc = ACC + 32*(p & 1)
        for i in range(2):
            if rd: A(rd[i])
            lg = "" if boundary else f"lgkmcnt({(i+1 if rd else 0) + 1 - i})"
            if i == 0 and p == 0 and k < 40: A.vm_wait(f"x{k}", lg)
            elif lg: A(f"s_waitcnt {lg}")
            b = a(4*k, 4) if k < 40 else v(XB, 4)
            A(f"v_mfma_f32_32x32x16_bf16 {v(acc+16*i,16)}, {v(VA+8*(n&1)+4*i,4)}, {b}, {'0' if k == 0 else v(acc+16*i,16)}")
            if k >= 3:
                for _ in range(2):
                    if pend: emit(pend.pop(0))
        assert not (k == 40 and pend)
    A.stamp(6)
    for op in epilogue(2): emit(op)
    A.stamp(7)
    A.label("Lk4_end")
    A("s_endpgm")
    return A, 256, 96
```

```python
from fcommon import *
from k4 import C1, C2
from front import poll_granules, srd_from_kernarg
L_GB = L_FLAG + 64

NCH = 29
OPT = dict(x0=8, pfwd=True)
class Stream:
    SSRC, SLDS, ST = 44, 45, 46
    def __init__(self, A, vlane16, s_w4):
        self.A = A; self.vl = vlane16; self.w4 = s_w4
    def init(self):
        A = self.A
        A(f"s_mul_i32 {s(self.SLDS)}, {s(self.w4)}, 5120")
    def base(self, n):
        A = self.A
        if n == 0:
            A(f"s_mul_i32 {s(self.SSRC)}, {s(SNG)}, 102400\ns_add_u32 {s(self.SSRC)}, {s(self.SSRC)}, {WS_WO}")
        elif n == 5:
            A(f"s_mul_i32 {s(self.SSRC)}, {s(SFB)}, {GU_BLOCK}\ns_add_u32 {s(self.SSRC)}, {s(self.SSRC)}, {WS_WGU}")
            A(f"s_min_u32 {s(self.ST)}, {s(self.w4)}, 2\ns_lshl_b32 {s(self.ST)}, {s(self.ST)}, 11\ns_add_u32 {s(self.ST+1)}, {s(self.ST)}, {s(self.SSRC)}")
            dma(A, self.vl, SRD_WS, s(self.ST+1), self.ST, L_XTRA, "c5")
            dma(A, self.vl, SRD_WS, s(self.ST+1), self.ST, L_XTRA, "c5", imm=1024, set_m0=False)
            A(f"s_add_u32 {s(self.SSRC)}, {s(self.SSRC)}, 6144")
        elif n == 17:
            A(f"s_mul_i32 {s(self.SSRC)}, {s(SNG)}, 245760\ns_add_u32 {s(self.SSRC)}, {s(self.SSRC)}, {WS_WD}")
        else:
            A(f"s_add_u32 {s(self.SSRC)}, {s(self.SSRC)}, {SLOT}")
            return
        A(f"s_add_u32 {s(self.SSRC)}, {s(self.SSRC)}, {s(self.SLDS)}")
    def issue(self, n):
        A = self.A
        self.base(n)
        sl = slot_of(n)
        dma(A, self.vl, SRD_WS, s(self.SSRC), self.SLDS, sl, f"c{n}")
        for i in range(1, 4): dma(A, self.vl, SRD_WS, s(self.SSRC), self.SLDS, sl, f"c{n}", imm=1024*i, set_m0=False)
        A(f"s_add_u32 {s(self.ST)}, {s(self.SSRC)}, 4096")
        dma(A, self.vl, SRD_WS, s(self.ST), self.SLDS, sl + 4096, f"c{n}")
    def check(self, soff, n, vt):
        A = self.A
        L = A.newlabel("chkok")
        A.vm_wait("chk")
        A(f"s_mov_b64 exec, {hex((1 << n) - 1)}\nv_cmp_ne_u32 vcc, {s(STAG)}, {v(vt+1)}\ns_mov_b64 exec, -1")
        A(f"s_cbranch_vccz {L}")
        keep = list(A.vm)
        poll_flags(A, n, vt, vt+1, soff, self.ST)
        A.vm = keep
        A.label(L)
    def run(self, issued, sched, checks=None, vt=None, hooks=None):
        A = self.A
        nxt = issued
        checks = checks or {}
        for n in range(NCH):
            assert nxt > n
            A.vm_wait(f"c{n}")
            if n in checks: self.check(checks[n][0], checks[n][1], vt)
            if n in (0, 5, 17): A.stamp({0: 5, 5: 6, 17: 7}[n])
            A("s_barrier")
            if n + 1 in checks:
                A(f"s_mov_b64 exec, {hex((1 << checks[n+1][1]) - 1)}")
                A.vmem(f"buffer_load_dword {v(vt+1)}, {v(vt)}, {s(SRD_WS,4)}, {checks[n+1][0]} offen{SC}", "chk")
                A("s_mov_b64 exec, -1")
            lim = min(NCH, sched.get(n, n + 7))
            assert lim <= n + 7
            while nxt < lim: self.issue(nxt); nxt += 1
            if hooks and n in hooks: hooks[n]()

def gemm16(A, n0, KS, VB, NB, VA, VACC, vb3, after=None):
    def aread(ks):
        off = slot_of(n0 + ks // 4) + (ks % 4) * 5120
        for i in range(5):
            o = off + 1024*i
            A(f"ds_read_b128 {v(VA+20*(ks&1)+4*i,4)}, {v(vb3[o//61440])} offset:{o%61440}")
    A("s_barrier")
    aread(0)
    for ks in range(KS):
        boundary = ks + 1 < KS and (ks + 1) % 4 == 0
        if ks + 1 < KS:
            if boundary: A("s_waitcnt lgkmcnt(0)\ns_barrier")
            aread(ks + 1)
        for i in range(5):
            lg = "" if boundary else f"lgkmcnt({(5 if ks+1 < KS else 0) + 4 - i})"
            if i == 0: A.vm_wait(f"b{ks}", lg)
            elif lg: A(f"s_waitcnt {lg}")
            A(f"v_mfma_f32_16x16x32_bf16 {v(VACC+4*i,4)}, {v(VA+20*(ks&1)+4*i,4)}, {v(VB+4*(ks%NB),4)}, {'0' if ks == 0 else v(VACC+4*i,4)}")
        if after: after(ks)

VL, VL16, VB1, VB2 = 1, 2, 3, 4
ST16 = 24

def lane_consts(A):
    A(f"v_and_b32 {v(VL)}, 63, v0\nv_lshlrev_b32 {v(VL16)}, 4, {v(VL)}")
    A(f"v_add_u32 {v(VB1)}, 61440, {v(VL16)}\nv_add_u32 {v(VB2)}, 122880, {v(VL16)}")

def lane_consts2(A):
    A(f"v_add_u32 {v(VB1)}, 61440, {v(VL16)}\nv_add_u32 {v(VB2)}, 122880, {v(VL16)}")

def epi_addrs(A, VNAT, VM, t0):
    A(f"v_lshrrev_b32 {v(t0)}, 4, {v(VL)}\nv_and_b32 {v(VNAT)}, 15, {v(VL)}\nv_mul_u32_u24 {v(VNAT)}, 1280, {v(VNAT)}")
    A(f"v_lshl_add_u32 {v(VNAT)}, {v(t0)}, 3, {v(VNAT)}\nv_lshlrev_b32 {v(VM)}, 4, {v(t0)}")

def p3(A, wait_flags=True):
    VNAT, VM, VT, VT2 = 5, 6, 7, 8
    VA, VACC, VX, VGATE, VCB, VB = 12, 52, 72, 84, 104, 124
    A.vm_reset()
    A(f"s_lshl_b32 {s(ST16)}, {s(STG)}, 2\ns_add_u32 {s(ST16)}, {s(ST16)}, {s(SW)}")
    epi_addrs(A, VNAT, VM, VT)
    A(f"s_mul_i32 s25, {s(ST16)}, 20480\ns_mul_i32 s26, {s(SNG)}, 160\ns_add_u32 s26, s26, s25\ns_add_u32 s25, s25, {WS_O}")
    for i in range(5):
        A(f"buffer_load_dwordx2 {v(VX+2*i,2)}, {v(VNAT)}, {s(SRD_X,4)}, s26 offen offset:{32*i}")
    A(f"s_mul_i32 s27, {s(SNG)}, 640\ns_add_u32 s27, s27, {SY_MODG + 80*128}\ns_add_u32 s28, s27, {80*128}\ns_add_u32 s29, s27, {120*128}")
    G = VB
    poll_granules(A, [(G + 20*j + 4*i, VM, so, None, 128*i) for j, so in enumerate(("s27", "s28", "s29")) for i in range(5)], 25)
    for j, dst in ((0, VGATE), (1, VCB)):
        for i in range(5):
            g = G + 20*j + 4*i
            unpack_lo(A, dst+4*i, g); unpack_hi(A, dst+4*i+1, g); unpack_lo(A, dst+4*i+2, g+2); unpack_hi(A, dst+4*i+3, g+2)
    A(f"s_mul_i32 s27, {s(SW)}, 160\ns_add_u32 s27, s27, {L_GB}\nv_lshrrev_b32 {v(VT)}, 1, {v(VM)}\nv_add_u32 {v(VT)}, s27, {v(VT)}")
    for i in range(5):
        g = G + 40 + 4*i
        A(f"v_mov_b32 {v(g+1)}, {v(g+2)}\nds_write_b64 {v(VT)}, {v(g,2)} offset:{32*i}")
    A(f"s_mul_i32 s25, {s(ST16)}, 20480\ns_add_u32 s25, s25, {WS_O}")
    if wait_flags:
        A(f"s_lshl_b32 s29, {s(STG)}, 8\ns_add_u32 s29, s29, {SY_FL2}\nv_lshlrev_b32 {v(VT)}, 2, {v(VL)}")
        poll_flags(A, 64, VT, VT2, "s29", 30)
    A.stamp(5)
    def bload(ks):
        if ks % 4 == 0 and ks: A("s_add_u32 s25, s25, 4096")
        A.vmem(f"buffer_load_dwordx4 {v(VB+4*ks,4)}, {v(VL16)}, {s(SRD_WS,4)}, s25 offen offset:{(ks%4)*1024}{SC}", f"b{ks}")
    for ks in range(20): bload(ks)
    gemm16(A, 0, 20, VB, 20, VA, VACC, (VL16, VB1, VB2))
    A.stamp(6)
    A.vm_drain()
    XF = VA
    for i in range(5):
        for q in range(2):
            unpack_lo(A, XF+4*i+2*q, VX+2*i+q); unpack_hi(A, XF+4*i+2*q+1, VX+2*i+q)
    for r in range(20): A(f"v_fma_f32 {v(XF+r)}, {v(VACC+r)}, {v(VGATE+r)}, {v(XF+r)}")
    for r in range(10): A(f"v_cvt_pk_bf16_f32 {v(VX+r)}, {v(XF+2*r)}, {v(XF+2*r+1)}")
    for r in range(10):
        unpack_lo(A, XF+2*r, VX+r); unpack_hi(A, XF+2*r+1, VX+r)
    for r in range(20): A(f"v_mul_f32 {v(VACC+r)}, {v(XF+r)}, {v(VCB+r)}")
    Y = VGATE
    for r in range(10): A(f"v_cvt_pk_bf16_f32 {v(Y+r)}, {v(VACC+2*r)}, {v(VACC+2*r+1)}")
    A(f"s_lshr_b32 s29, {s(ST16)}, 1\ns_mul_i32 s29, s29, 40960\ns_mul_i32 s30, {s(SNG)}, 5120\ns_add_u32 s29, s29, s30")
    A(f"s_and_b32 s30, {s(ST16)}, 1\ns_lshl_b32 s30, s30, 8\ns_add_u32 s29, s29, s30\ns_add_u32 s29, s29, {WS_Y}\ns_add_u32 s30, s29, 4096")
    A(f"v_lshrrev_b32 {v(VM)}, 5, {v(VL)}\nv_lshlrev_b32 {v(VM)}, 9, {v(VM)}\nv_and_b32 {v(VT)}, 15, {v(VL)}\nv_lshl_add_u32 {v(VM)}, {v(VT)}, 4, {v(VM)}")
    A(f"v_bfe_u32 {v(VT2)}, {v(VL)}, 4, 1\nv_lshl_add_u32 {v(VM)}, {v(VT2)}, 3, {v(VM)}")
    for i in range(5):
        A.vmem(f"buffer_store_dwordx2 {v(Y+2*i,2)}, {v(VM)}, {s(SRD_WS,4)}, {'s29' if i < 4 else 's30'} offen offset:{1024*(i%4)}{SC}", "y")
    S0, S1, T0, T1 = VCB, VCB+1, VCB+2, VCB+3
    A(f"v_add_f32 {v(S0)}, {v(XF)}, {v(XF+1)}\nv_mul_f32 {v(S1)}, {v(XF)}, {v(XF)}\nv_fmac_f32 {v(S1)}, {v(XF+1)}, {v(XF+1)}")
    for r in range(2, 20):
        A(f"v_add_f32 {v(S0)}, {v(S0)}, {v(XF+r)}\nv_fmac_f32 {v(S1)}, {v(XF+r)}, {v(XF+r)}")
    sum_halves16(A, S0, T0); sum_halves16(A, S1, T1)
    sum_halves32(A, S0, T0); sum_halves32(A, S1, T1)
    A(f"s_lshl_b32 s29, {s(ST16)}, 10\ns_lshl_b32 s30, {s(SNG)}, 3\ns_add_u32 s29, s29, s30\ns_add_u32 s29, s29, {WS_STATS}")
    A(f"v_lshlrev_b32 {v(VM)}, 6, {v(VT)}")
    A("s_mov_b64 exec, 0xffff")
    A.vmem(f"buffer_store_dwordx2 {v(S0,2)}, {v(VM)}, {s(SRD_WS,4)}, s29 offen{SC}", "y")
    A("s_mov_b64 exec, -1")
    A(f"s_mul_i32 s29, {s(SW)}, 2560\ns_add_u32 s29, s29, {L_X1}\nv_lshl_add_u32 {v(VM)}, {v(VL)}, 3, s29")
    for i in range(5): A(f"ds_write_b64 {v(VM)}, {v(VX+2*i,2)} offset:{512*i}")
    A(f"s_lshr_b32 s29, {s(ST16)}, 1\ns_lshl_b32 s29, s29, 5\ns_lshl_b32 s30, {s(SNG)}, 1\ns_add_u32 s29, s29, s30\ns_and_b32 s30, {s(ST16)}, 1\ns_add_u32 s29, s29, s30")
    A(f"s_lshl_b32 s29, s29, 2\ns_add_u32 s29, s29, {SY_FL3}")
    A.vm_drain()
    set_flag(A, "s29", VT, VT2)
    A.stamp(7)

def p4(A):
    VST = 0
    XB, K1, K2, IR2, T = 6, 5, 10, 11, 12
    VA, ACC, XR = 16, 32, 96
    A.vm_reset()
    A(f"s_lshr_b32 s25, {s(STG)}, 1\ns_lshl_b32 s25, s25, 2\ns_add_u32 s25, s25, {s(SW)}")
    A(f"s_lshl_b32 s29, s25, 7\ns_add_u32 s29, s29, {SY_FL3}\nv_lshlrev_b32 {v(T)}, 2, {v(VL)}")
    poll_flags(A, 16, T, T+1, "s29", 30)
    A.stamp(8)
    ST = ACC + 32
    A(f"v_and_b32 {v(T)}, 31, {v(VL)}\nv_lshlrev_b32 {v(T+1)}, 6, {v(T)}")
    A(f"s_lshl_b32 s26, s25, 11\ns_add_u32 s26, s26, {WS_STATS}")
    for q in range(4):
        A.vmem(f"buffer_load_dwordx4 {v(ST+4*q,4)}, {v(T+1)}, {s(SRD_WS,4)}, s26 offen offset:{16*q}{SC}", "st")
    A(f"s_mul_i32 s26, s25, 40960\ns_add_u32 s26, s26, {WS_Y}")
    def xload(k):
        if k and k % 4 == 0: A("s_add_u32 s26, s26, 4096")
        A.vmem(f"buffer_load_dwordx4 {v(XR+4*k,4)}, {v(VL16)}, {s(SRD_WS,4)}, s26 offen offset:{(k%4)*1024}{SC}", f"x{k}")
    X0 = OPT["x0"]
    for k in range(X0): xload(k)
    A(f"v_cmp_gt_u32 s[30:31], 32, {v(VL)}")
    A(f"v_lshrrev_b32 {v(T+1)}, 4, {v(T)}\nv_mul_u32_u24 {v(T+1)}, 49152, {v(T+1)}\nv_and_b32 {v(T)}, 15, {v(T)}\nv_lshl_add_u32 {v(T+1)}, {v(T)}, 4, {v(T+1)}")
    A(f"v_lshrrev_b32 {v(T)}, 5, {v(VL)}\nv_lshl_add_u32 {v(VST)}, {v(T)}, 8, {v(T+1)}")
    A(f"s_mul_i32 s27, s25, 98304\ns_lshl_b32 s28, {s(SFB)}, 10\ns_add_u32 s27, s27, s28\ns_add_u32 s27, s27, {WS_HM}")
    A(f"s_lshl_b32 s28, s25, 8\ns_lshl_b32 s29, {s(SFB)}, 2\ns_add_u32 s28, s28, s29\ns_add_u32 s28, s28, {SY_FL4}")
    def stats(A):
        for q in range(2):
            A(f"v_add_f32 {v(ST+q)}, {v(ST+q)}, {v(ST+2+q)}")
            for z in range(1, 4):
                A(f"v_add_f32 {v(ST+4*z+q)}, {v(ST+4*z+q)}, {v(ST+4*z+2+q)}")
            A(f"v_add_f32 {v(ST+q)}, {v(ST+q)}, {v(ST+4+q)}\nv_add_f32 {v(ST+8+q)}, {v(ST+8+q)}, {v(ST+12+q)}\nv_add_f32 {v(ST+q)}, {v(ST+q)}, {v(ST+8+q)}")
        MU, VAR, RR, RHO = ST, ST+1, ST+2, ST+3
        A(f"v_mul_f32 {v(MU)}, 0xbacccccd, {v(MU)}")
        A(f"v_mul_f32 {v(VAR)}, 0x3acccccd, {v(VAR)}")
        A(f"v_fma_f32 {v(VAR)}, -{v(MU)}, {v(MU)}, {v(VAR)}\nv_max_f32 {v(VAR)}, 0, {v(VAR)}\nv_add_f32 {v(IR2)}, 0x3727c5ac, {v(VAR)}")
        A(f"v_rsq_f32 {v(RR)}, {v(IR2)}\nv_sqrt_f32 {v(RHO)}, {v(IR2)}")
        A(f"v_mul_f32 {v(K1)}, {fbits(C1)}, {v(RR)}\nv_mul_f32 {v(K2)}, {v(RR)}, {v(RR)}\nv_mul_f32 {v(K2)}, {v(K2)}, {v(RR)}\nv_mul_f32 {v(K2)}, {fbits(C2)}, {v(K2)}")
        A(f"v_cvt_pk_bf16_f32 {v(ST+4)}, {v(MU)}, {v(RHO)}")
        A(f"v_lshlrev_b32 {v(ST+5)}, 16, {v(ST+4)}\nv_and_b32 {v(ST+6)}, 0xffff0000, {v(ST+4)}")
        A(f"v_sub_f32 {v(ST+5)}, {v(MU)}, {v(ST+5)}\nv_sub_f32 {v(ST+6)}, {v(RHO)}, {v(ST+6)}")
        A(f"v_cvt_pk_bf16_f32 {v(XB)}, {v(MU)}, {v(ST+5)}")
        A(f"v_cvt_pk_bf16_f32 {v(XB+2)}, {v(ST+6)}, {v(RHO)}")
        A(f"v_cndmask_b32 {v(XB)}, 0, {v(XB)}, s[30:31]\nv_cndmask_b32 {v(XB+1)}, 0, {v(ST+4)}, s[30:31]\nv_cndmask_b32 {v(XB+2)}, 0, {v(XB+2)}, s[30:31]\nv_mov_b32 {v(XB+3)}, 0")
    SA = Asm(); stats(SA); stat_ops = SA.lines
    seq = [(p, k) for p in range(3) for k in range(41)]
    vb3 = (VL16, VB1, VB2)
    def lds_off(p, k, i):
        if k == 40: return L_XTRA + (2*p + i) * 1024
        gs = 40*p + k
        return slot_of(5 + gs // 10) + ((gs % 10)*2 + i) * 1024
    def aread(n):
        p, k = seq[n]
        return [f"ds_read_b128 {v(VA+8*(n&1)+4*i,4)}, {v(vb3[lds_off(p,k,i)//61440])} offset:{lds_off(p,k,i)%61440}" for i in range(2)]
    def epilogue(p):
        ops = []
        for i in range(2):
            acc = ACC + 32*(p & 1) + 16*i
            for e0 in range(0, 8, 2):
                E = (e0, e0+1)
                for j, e in enumerate(E): ops.append(f"v_mul_f32 {v(T+j)}, {v(acc+e)}, {v(acc+e)}")
                for j, e in enumerate(E): ops.append(f"v_fma_f32 {v(T+j)}, {v(T+j)}, {v(K2)}, {v(K1)}")
                for j, e in enumerate(E): ops.append(f"v_mul_f32 {v(T+j)}, {v(T+j)}, {v(acc+e)}")
                for j, e in enumerate(E): ops.append(f"v_exp_f32 {v(T+j)}, {v(T+j)}")
                ops.append(f"v_mul_f32 {v(acc+8+e0)}, {v(acc+8+e0)}, {v(acc+e0)}")
                for j, e in enumerate(E): ops.append(f"v_fma_f32 {v(T+j)}, {v(T+j)}, {v(IR2)}, {v(IR2)}")
                for j, e in enumerate(E): ops.append(f"v_rcp_f32 {v(T+j)}, {v(T+j)}")
                ops.append(f"v_mul_f32 {v(acc+9+e0)}, {v(acc+9+e0)}, {v(acc+1+e0)}")
                for j, e in enumerate(E): ops.append(f"v_mul_f32 {v(acc+8+e)}, {v(acc+8+e)}, {v(T+j)}")
                ops.append(f"v_cvt_pk_bf16_f32 {v(acc+e0//2)}, {v(acc+8+e0)}, {v(acc+9+e0)}")
            ops.append(("store", f"buffer_store_dwordx4 {v(acc,4)}, {v(VST)}, {s(SRD_WS,4)}, s27 offen offset:{512*i}{SC}"))
        ops.append("s_add_u32 s27, s27, 16384")
        return ops
    def emit(op):
        if isinstance(op, tuple): A.vmem(op[1], "out")
        else: A(op)
    A("s_barrier")
    A.stamp(9)
    for r in aread(0): A(r)
    pend = list(stat_ops)
    xn = X0
    for n, (p, k) in enumerate(seq):
        if k == 0 and p > 0: pend = epilogue(p - 1); A.stamp(9 + p)
        if p == 2 and k == 8:
            A.vm_drain(); set_flag(A, "s28", T+2, T+3); A("s_add_u32 s28, s28, 64")
        boundary = False
        if n + 1 < len(seq):
            p2, k2 = seq[n+1]
            if k2 != 40 and (40*p2 + k2) % 10 == 0:
                A("s_waitcnt lgkmcnt(0)\ns_barrier"); boundary = True
            rd = aread(n + 1)
        else: rd = []
        acc = ACC + 32*(p & 1)
        for i in range(2):
            if rd: A(rd[i])
            lg = "" if boundary else f"lgkmcnt({(i+1 if rd else 0) + 1 - i})"
            if i == 0 and p == 0 and k < 40: A.vm_wait(f"x{k}", lg)
            elif lg: A(f"s_waitcnt {lg}")
            b = v(XR+4*k, 4) if k < 40 else v(XB, 4)
            A(f"v_mfma_f32_32x32x16_bf16 {v(acc+16*i,16)}, {v(VA+8*(n&1)+4*i,4)}, {b}, {'0' if k == 0 else v(acc+16*i,16)}")
            if p == 0 and xn < 40: xload(xn); xn += 1
            if k >= (3 if p else 20):
                for _ in range(3 if p else 2):
                    if pend: emit(pend.pop(0))
        assert not (k == 40 and pend)
    A.stamp(12)
    A.vm_drain(); set_flag(A, "s28", T+2, T+3); A("s_add_u32 s28, s28, 64")
    A(f"s_mul_i32 s25, {s(ST16)}, 49152\ns_add_u32 s25, s25, {WS_HM}")
    nb = 0
    for j, op in enumerate(epilogue(2)):
        emit(op)
        if j % 8 == 0 and nb < 16: p5_bload(A, nb); nb += 1
    assert nb == 16
    A.stamp(13)

P5VB, P5NB = 128, 32
def p5_bload(A, ks):
    if ks % 4 == 0 and ks: A("s_add_u32 s25, s25, 4096")
    A.vmem(f"buffer_load_dwordx4 {v(P5VB+4*(ks%P5NB),4)}, {v(VL16)}, {s(SRD_WS,4)}, s25 offen offset:{(ks%4)*1024}{SC}", f"b{ks}")

def p5(A):
    VNAT, VM, VT, VT2 = 5, 6, 7, 8
    VA, VACC, VX, VGATE = 64, 104, 12, 24
    epi_addrs(A, VNAT, VM, VT)
    A(f"s_mul_i32 s26, {s(ST16)}, 20480\ns_mul_i32 s27, {s(SNG)}, 160\ns_add_u32 s26, s26, s27")
    A(f"s_mul_i32 s29, {s(SW)}, 2560\ns_add_u32 s29, s29, {L_X1}\nv_lshl_add_u32 {v(VT)}, {v(VL)}, 3, s29")
    for i in range(5): A(f"ds_read_b64 {v(VX+2*i,2)}, {v(VT)} offset:{512*i}")
    A(f"s_mul_i32 s29, {s(SW)}, 160\ns_add_u32 s29, s29, {L_GB}\nv_lshrrev_b32 {v(VM)}, 1, {v(VM)}\nv_add_u32 {v(VM)}, s29, {v(VM)}")
    for i in range(5): A(f"ds_read_b64 {v(VGATE+20+2*i,2)}, {v(VM)} offset:{32*i}")
    A("s_waitcnt lgkmcnt(0)")
    for i in range(5):
        for q in range(2):
            unpack_lo(A, VGATE+4*i+2*q, VGATE+20+2*i+q); unpack_hi(A, VGATE+4*i+2*q+1, VGATE+20+2*i+q)
    A.stamp(14)
    st = dict(nb=16)
    def after(ks):
        if ks == 3:
            A.vm_wait("out"); set_flag(A, "s28", VT, VT2)
        if 4 <= ks < 12 or 16 <= ks < 24:
            for _ in range(2): p5_bload(A, st["nb"]); st["nb"] += 1
    gemm16(A, 17, 48, P5VB, P5NB, VA, VACC, (VL16, VB1, VB2), after)
    A.stamp(15)
    XF = VA
    for i in range(5):
        for q in range(2):
            unpack_lo(A, XF+4*i+2*q, VX+2*i+q); unpack_hi(A, XF+4*i+2*q+1, VX+2*i+q)
    for r in range(20): A(f"v_fma_f32 {v(XF+r)}, {v(VACC+r)}, {v(VGATE+r)}, {v(XF+r)}")
    for r in range(10): A(f"v_cvt_pk_bf16_f32 {v(VX+r)}, {v(XF+2*r)}, {v(XF+2*r+1)}")
    for i in range(5):
        A(f"buffer_store_dwordx2 {v(VX+2*i,2)}, {v(VNAT)}, {s(SRD_OUT,4)}, s26 offen offset:{32*i}")
    A.stamp(16)

def loader_tail(A, S, issued):
    VT = 6
    A(f"s_lshl_b32 s25, {s(STG)}, 1\ns_lshl_b32 s25, s25, 8\ns_add_u32 s25, s25, {SY_FL4}\ns_add_u32 s26, s25, 64\ns_add_u32 s27, s25, 128")
    A(f"v_and_b32 {v(VT)}, 15, {v(VL)}\nv_lshlrev_b32 {v(VT)}, 2, {v(VT)}\nv_bfe_u32 {v(VT+1)}, {v(VL)}, 4, 1\nv_lshl_add_u32 {v(VT)}, {v(VT+1)}, 8, {v(VT)}")
    sched = {5: 11, 6: 11, 7: 11}
    def pf_setup():
        A(f"s_lshr_b32 s28, {s(SNG)}, 2\ns_lshl_b32 s28, s28, 2\ns_add_u32 s28, s28, {SY_FLP + (96+40)*4}\nv_lshlrev_b32 {v(VT+2)}, 3, {v(VL)}")
        keep = list(A.vm)
        poll_flags(A, 48, VT+2, VT+3, "s28", 29)
        A.vm = []
        A(f"s_and_b32 s28, {s(STG)}, 3\ns_lshl_b32 s28, s28, 2\ns_add_u32 s28, s28, {s(S.w4)}\ns_mul_i32 s28, s28, 15360")
        A(f"s_mul_i32 s29, {s(SNG)}, 245760\ns_add_u32 s28, s28, s29\ns_add_u32 s28, s28, {WS_WD}")
        A(f"v_lshlrev_b32 {v(VT+2)}, 7, {v(VL)}")
    def pf_wd():
        A("s_mov_b64 exec, 0x7fff")
        A.vmem(f"buffer_load_dword {v(VT+3)}, {v(VT+2)}, {s(SRD_WS,4)}, s28 offen{SC}", "pf")
        A("s_mov_b64 exec, -1\ns_add_u32 s28, s28, 1920")
    hooks = {n: pf_wd for n in range(8, 16)} if OPT["pfwd"] else {}
    hooks[4] = pf_setup
    S.run(issued, sched, checks={16: ("s25", 32), 18: ("s26", 32), 21: ("s27", 32)}, vt=VT, hooks=hooks)

def update_epoch(A, vt0, vt1):
    L = A.newlabel("noepoch")
    A(f"s_or_b32 s29, s2, {s(SW)}\ns_cmp_lg_u32 s29, 0\ns_cbranch_scc1 {L}")
    A(f"s_mov_b32 s29, {SY_EPOCH}")
    set_flag(A, "s29", vt0, vt1, local=False)
    A.label(L)

NAME = "post_kernel"; GRID = 256; BLOCK = 512; LDS = LDS_ALL
def gen():
    A = Asm()
    A(f"s_cmp_ge_u32 s2, {GRID}\ns_cbranch_scc1 Lpo_end")
    load_ptr(A, "ws", 4); load_ptr(A, "x", 12); load_ptr(A, "out", 16)
    wave_id(A, SW, 1)
    ids(A); lane_consts(A)
    A("s_waitcnt lgkmcnt(0)")
    read_epoch(A, 4, 6)
    make_srd(A, SRD_WS, 4, WS_TOP); make_srd(A, SRD_X, 12, NBYTES["x"]); make_srd(A, SRD_OUT, 16, NBYTES["out"])
    A(f"s_cmp_lt_u32 {s(SW)}, 4\ns_cbranch_scc1 Lpo_comp")
    A(f"s_sub_u32 s43, {s(SW)}, 4")
    A.vm_reset()
    S = Stream(A, VL16, 43); S.init()
    for n in range(5): S.issue(n)
    A("s_waitcnt lgkmcnt(0)")
    epoch_to_tag(A)
    loader_tail(A, S, 5)
    A("s_endpgm")
    A.label("Lpo_comp")
    A("s_waitcnt lgkmcnt(0)")
    epoch_to_tag(A)
    p3(A, wait_flags=False); p4(A); p5(A)
    update_epoch(A, 7, 8)
    A.label("Lpo_end")
    A("s_endpgm")
    return A, 256, 256
```

```python
import sys, os
sys.path.insert(0, os.path.dirname(os.path.abspath(__file__)))
from emit import *
import common, fused

HEADER = open(os.path.join(os.path.dirname(os.path.abspath(__file__)), "header.txt")).read()

def kernels():
    return [(fused.NAME, fused.gen, fused.GRID, fused.BLOCK, fused.LDS)]

def build(ks=None, extra_launches=(), stamp=False):
    ks = ks or kernels()
    if len(ks) == 1:
        launch = [f"; @launch grid=({g},1,1) block=({b},1,1) lds={l}" for (n, _, g, b, l) in ks]
    else:
        launch = [f"; @launch kernel={n} grid=({g},1,1) block=({b},1,1) lds={l}" for (n, _, g, b, l) in ks]
    launch += list(extra_launches)
    text, kds = [], []
    for i, (n, gen, g, b, l) in enumerate(ks):
        A, vg, ac = gen()
        t, kd, nops = kernel_text(n, A, vg, ac, stamp=i if stamp else None)
        text.append(t); kds.append(kd)
    return (HEADER + "\n".join(launch) + '\n.amdgcn_target "amdgcn-amd-amdhsa--gfx950"\n.text\n' + "".join(text)
            + '.section .rodata,"a"\n' + "".join(".p2align 6\n" + kd for kd in kds))

if __name__ == "__main__":
    out = sys.argv[1] if len(sys.argv) > 1 else "adaLN_cond__grouped_kv_mqa__glu_gated_geglu__prompt.s"
    s_ = build()
    open(out, "w").write(s_)
    open("stamp.s", "w").write(build(stamp=True))
    print("wrote", out, len(s_))
```

```python
import re

def v(i, n=1):
    return f"v{i}" if n == 1 else f"v[{i}:{i+n-1}]"
def a(i, n=1):
    return f"a{i}" if n == 1 else f"a[{i}:{i+n-1}]"
def s(i, n=1):
    return f"s{i}" if n == 1 else f"s[{i}:{i+n-1}]"

_REG = re.compile(r"^-?\|?(?:abs\()?([vas])(?:(\d+)|\[(\d+):(\d+)\])\)?\|?$")

def regs_of(tok):
    tok = tok.strip()
    if tok in ("vcc",): return {("s", 106), ("s", 107)}
    if tok == "vcc_lo": return {("s", 106)}
    if tok == "vcc_hi": return {("s", 107)}
    if tok == "exec": return {("s", 126), ("s", 127)}
    if tok == "exec_lo": return {("s", 126)}
    if tok == "exec_hi": return {("s", 127)}
    if tok == "m0": return {("s", 124)}
    m = _REG.match(tok)
    if not m: return set()
    k = m.group(1)
    if m.group(2) is not None:
        return {(k, int(m.group(2)))}
    return {(k, i) for i in range(int(m.group(3)), int(m.group(4)) + 1)}

TRANS = ("v_exp_f32", "v_log_f32", "v_rcp_f32", "v_rsq_f32", "v_sqrt_f32", "v_sin_f32", "v_cos_f32", "v_rcp_iflag_f32")
MFMA_PASSES = {"v_mfma_f32_32x32x16_bf16": 8, "v_mfma_f32_16x16x32_bf16": 4, "v_mfma_f32_32x32x8bf16_1k": 8,
               "v_mfma_f32_32x32x4bf16_1k": 16}

class Ins:
    __slots__ = ("text", "op", "ops", "kind", "defs", "uses", "srcc", "srcab", "dpp", "states", "label", "target", "passes", "stdata", "lds_dma")
    def __init__(self, text):
        self.text = text
        self.label = None; self.target = None; self.passes = 0
        self.defs = set(); self.uses = set(); self.srcc = set(); self.srcab = set(); self.stdata = set()
        self.dpp = False; self.states = 1; self.lds_dma = False
        t = text.split(";")[0].strip()
        if not t or t.startswith("."):
            self.kind = "none"; self.op = ""; self.ops = []; self.states = 0; return
        if t.endswith(":"):
            self.kind = "label"; self.label = t[:-1]; self.op = ""; self.ops = []; self.states = 0; return
        parts = t.split(None, 1)
        op = parts[0]
        self.op = op = re.sub(r"_(e32|e64|dpp|sdwa)$", "", op)
        rest = parts[1] if len(parts) > 1 else ""
        toks = [x.strip() for x in rest.split(",")] if rest else []
        mods = ""
        if toks:
            last = toks[-1].split(None, 1)
            if len(last) > 1:
                toks[-1] = last[0]; mods = last[1]
        if "op_sel" in rest and "[" in mods and "," in rest:
            m = re.search(r"\s(op_sel|op_sel_hi|neg_lo|neg_hi):", rest)
            if m:
                toks = [x.strip() for x in rest[:m.start()].split(",")]; mods = rest[m.start():]
        self.ops = toks
        R = [regs_of(x) for x in toks]
        if op.startswith("v_mfma"):
            self.kind = "mfma"; self.passes = MFMA_PASSES[op]
            self.defs = R[0]; self.srcab = R[1] | R[2]; self.srcc = R[3]; self.uses = self.srcab | self.srcc
        elif op.startswith("v_"):
            self.kind = "valu"
            self.dpp = ("quad_perm" in mods or "row_" in mods or "wave_" in mods)
            if op.startswith("v_cmp"):
                self.defs = R[0]; self.uses = set().union(*R[1:])
            elif op in ("v_permlane32_swap_b32", "v_permlane16_swap_b32"):
                self.defs = R[0] | R[1]; self.uses = R[0] | R[1]; self.kind = "permlane"
            elif op in ("v_add_co_u32", "v_sub_co_u32", "v_addc_co_u32", "v_subb_co_u32", "v_mad_u64_u32"):
                self.defs = R[0] | R[1]; self.uses = set().union(*R[2:])
            elif op in ("v_readfirstlane_b32", "v_readlane_b32"):
                self.defs = R[0]; self.uses = set().union(*R[1:]); self.kind = "readlane"
            else:
                self.defs = R[0]; self.uses = set().union(*R[1:]) if len(R) > 1 else set()
                if op in ("v_fmac_f32", "v_writelane_b32", "v_pk_fmac_f16", "v_dot2c_f32_bf16") or "UNUSED_PRESERVE" in mods or self.dpp:
                    self.uses |= R[0]
                if op == "v_cndmask_b32" and len(toks) == 3:
                    self.uses |= regs_of("vcc")
        elif op.startswith("buffer_") or op.startswith("global_"):
            self.kind = "vmem"
            words = rest.split()
            if op.startswith("buffer_load") and " lds" in " " + mods:
                self.lds_dma = True; self.uses = set().union(*R) | regs_of("m0")
            elif op.startswith("global_load_lds"):
                self.lds_dma = True; self.uses = set().union(*R) | regs_of("m0")
            elif op.startswith("buffer_load"):
                self.defs = R[0]; self.uses = set().union(*R[1:])
            elif op.startswith("global_load"):
                self.defs = R[0]; self.uses = set().union(*R[1:])
            elif op.startswith("buffer_store"):
                self.uses = set().union(*R)
                if len(R[0]) >= 3: self.stdata = R[0]
            elif op.startswith("global_store"):
                self.uses = set().union(*R)
                if len(R[1]) >= 3: self.stdata = R[1]
            elif "atomic" in op:
                self.uses = set().union(*R)
                if "sc0" in mods: self.defs = R[0]
            else:
                self.uses = set().union(*R) if R else set()
        elif op.startswith("ds_"):
            self.kind = "ds"
            if op.startswith("ds_read") or op.startswith("ds_bpermute") or op.startswith("ds_swizzle") or "_rtn" in op:
                self.defs = R[0]; self.uses = set().union(*R[1:])
            else:
                self.uses = set().union(*R)
        elif op == "s_nop":
            self.kind = "salu"; self.states = int(toks[0], 0) + 1
        elif op.startswith("s_cbranch") or op == "s_branch":
            self.kind = "branch"; self.target = toks[0]
        elif op == "s_endpgm":
            self.kind = "end"
        elif op.startswith("s_load") or op.startswith("s_buffer_load") or op.startswith("s_memtime") or op.startswith("s_memrealtime"):
            self.kind = "smem"; self.defs = R[0]; self.uses = set().union(*R[1:]) if len(R) > 1 else set()
        elif op.startswith("s_"):
            self.kind = "salu"
            if op.startswith("s_cmp") or op in ("s_waitcnt", "s_barrier", "s_setprio", "s_sleep", "s_bitcmp0_b32", "s_bitcmp1_b32"):
                self.uses = set().union(*R) if R else set()
            elif "saveexec" in op:
                self.defs = R[0] | regs_of("exec"); self.uses = R[1] | regs_of("exec")
            else:
                self.defs = R[0] if R else set(); self.uses = set().union(*R[1:]) if len(R) > 1 else set()
        else:
            raise ValueError("unknown op " + text)

def vregs(rs): return {r for r in rs if r[0] in "va"}
def sregs(rs): return {r for r in rs if r[0] == "s"}

def need(p, c):
    n = 0
    pv = p.kind in ("valu", "permlane", "readlane")
    cv = c.kind in ("valu", "permlane", "readlane")
    if pv:
        dv = vregs(p.defs); ds_ = sregs(p.defs)
        if c.kind == "mfma" and dv & c.uses: n = max(n, 2)
        if c.kind == "readlane" and dv & c.uses: n = max(n, 1)
        if (c.kind == "permlane" or c.dpp) and dv & c.uses: n = max(n, 2)
        if p.op in TRANS and cv and c.op not in TRANS and dv & c.uses: n = max(n, 1)
        if p.op in TRANS and cv and c.op in TRANS and dv & c.uses: n = max(n, 1)
        if ds_:
            if cv and ds_ & c.uses: n = max(n, 4 if c.op in ("v_readlane_b32", "v_writelane_b32") else 2)
            if c.kind == "vmem" and ds_ & c.uses: n = max(n, 5)
            if c.kind in ("salu", "smem", "branch") and ds_ & c.uses: n = max(n, 2)
            if c.kind == "branch" and "vcc" in c.op and ds_ & regs_of("vcc"): n = max(n, 2)
    if p.kind == "mfma":
        P = p.passes
        D = p.defs
        if c.kind == "mfma":
            if D & c.srcc:
                if D == c.srcc and c.passes == P: n = max(n, 2 if P == 2 else 0)
                else: n = max(n, P + 2)
            if D & c.srcab: n = max(n, P + 4)
            if D & c.defs and not (D == c.defs and c.passes == P) and not (D & c.srcc):
                n = max(n, P + 2)
        elif cv:
            if D & (c.uses | c.defs): n = max(n, P + 4)
            if p.srcc & c.defs: n = max(n, P - 1)
        elif c.kind in ("vmem", "ds"):
            if D & (c.uses | c.defs): n = max(n, P + 4)
            if p.srcc & c.defs: n = max(n, P - 1)
    if p.kind == "salu" and ("s", 124) in p.defs and c.lds_dma: n = max(n, 1)
    if p.kind == "vmem" and p.stdata:
        if cv and p.stdata & c.defs: n = max(n, 2)
        elif c.kind in ("mfma", "ds", "vmem") and p.stdata & c.defs: n = max(n, 1)
    return n

MAXD = 22

class Asm:
    def __init__(self):
        self.lines = []
        self.vm = []
        self.uid = 0
    def __call__(self, text):
        for t in text.split("\n"):
            t = t.strip()
            if t: self.lines.append(t)
    phase = "post"
    only = None
    def stamp(self, i):
        if Asm.only is None or self.phase in Asm.only: self.lines.append(f";STAMP {i}")
    def rstamp(self, i): self.lines.append(f";RSTAMP {i}")
    def label(self, name): self.lines.append(name + ":")
    def newlabel(self, base):
        self.uid += 1
        return f"L{base}_{self.uid}"
    def vm_reset(self): self.vm = []
    def vmem(self, text, tag=None):
        self(text); self.vm.append(tag)
    def vm_wait(self, tag, extra=""):
        idx = [i for i, t in enumerate(self.vm) if t == tag]
        if not idx:
            if extra: self(f"s_waitcnt {extra}")
            return
        n = len(self.vm) - 1 - idx[-1]
        assert n <= 63
        self(f"s_waitcnt vmcnt({n}) {extra}".strip())
        self.vm = self.vm[idx[-1] + 1:]
    def vm_drain(self, extra=""):
        self(f"s_waitcnt vmcnt(0) {extra}".strip()); self.vm = []

def pad(lines, verbose=False):
    ins = [Ins(t) for t in lines]
    total = 0
    state = {}
    def rebuild():
        labels = {x.label: i for i, x in enumerate(ins) if x.kind == "label"}
        preds = {}
        for i, x in enumerate(ins):
            if x.kind == "branch":
                assert x.target in labels, x.text
                preds.setdefault(labels[x.target], []).append(i)
        state["preds"] = preds
    def walk(i, dist, c, seen, fall):
        best = 0
        j = i - 1
        preds = state["preds"]
        while j >= 0 and dist < MAXD:
            x = ins[j]
            if x.kind == "label":
                for pj in preds.get(j, []):
                    key = (pj, dist)
                    if key not in seen:
                        seen.add(key)
                        best = max(best, walk(pj + 1, dist, c, seen, False))
                j -= 1; fall = True; continue
            if x.kind == "none":
                j -= 1; continue
            if fall and (x.kind == "end" or x.op == "s_branch"): break
            d = need(x, c) - dist
            if d > best: best = d
            dist += x.states
            fall = True
            j -= 1
        return best
    for _round in range(20):
        rebuild()
        changed = False
        i = 0
        while i < len(ins):
            c = ins[i]
            if c.kind not in ("none", "label", "end"):
                d = walk(i, 0, c, set(), True)
                if d > 0:
                    if verbose: print("pad", d, "before", c.text)
                    k = d; new = []
                    while k > 0:
                        m = min(k, 16); new.append(Ins(f"s_nop {m-1}")); k -= m
                    ins[i:i] = new
                    i += len(new); total += d; changed = True
                    rebuild()
            i += 1
        if not changed: break
    else:
        raise RuntimeError("pad did not converge")
    return [x.text for x in ins], total

STAMP_BASE = 0x1800000
STAMP_STRIDE = 0x100000
def instrument(lines, kidx):
    pre = ["s_memrealtime s[92:93]", "s_memtime s[98:99]", "s_load_dwordx2 s[94:95], s[0:1], 104", "v_lshrrev_b32 v1, 6, v0", "s_nop 0",
           "v_readfirstlane_b32 s96, v1", "s_lshl_b32 s97, s2, 4", "s_nop 0", "s_add_u32 s96, s96, s97", "s_lshl_b32 s96, s96, 7",
           f"s_add_u32 s96, s96, {STAMP_BASE + kidx*STAMP_STRIDE}"]
    pre += [f"s_mov_b32 s{52+2*i}, 0" for i in range(18)]
    post = ["s_waitcnt vmcnt(0) lgkmcnt(0)", "s_memrealtime s[90:91]", "s_memtime s[88:89]", "s_mov_b64 exec, 1", "v_mov_b32 v0, s96", "v_mov_b32 v2, s92",
            "s_waitcnt lgkmcnt(0)", "v_mov_b32 v3, s90", "v_mov_b32 v4, s98", "v_mov_b32 v5, s88", "global_store_dwordx4 v0, v[2:5], s[94:95]"]
    for q in range(5):
        post += [f"v_mov_b32 v{6+4*q+j}, s{52+2*min(4*q+j, 17)}" for j in range(4)]
        post += [f"global_store_dwordx4 v0, v[{6+4*q}:{9+4*q}], s[94:95] offset:{16+16*q}"]
    post += ["s_endpgm"]
    out = list(pre)
    for l in lines:
        if l.strip() == "s_endpgm": out += post
        elif l.startswith(";STAMP"):
            i = int(l.split()[1]); out.append(f"s_memtime s[{52+2*i}:{53+2*i}]")
        elif l.startswith(";RSTAMP"):
            i = int(l.split()[1]); out.append(f"s_memrealtime s[{52+2*i}:{53+2*i}]")
        else: out.append(l)
    return out

def instrument_dbg(lines, keep):
    pre = ["s_memrealtime s[92:93]", "s_memtime s[98:99]", "s_load_dwordx2 s[94:95], s[0:1], 96", "v_lshrrev_b32 v1, 6, v0", "s_nop 0",
           "v_readfirstlane_b32 s96, v1", "s_nop 1", "s_or_b32 s96, s96, s2"]
    pre += [f"s_mov_b32 s{52+2*i}, 0" for i in range(18)]
    post = ["s_waitcnt vmcnt(0) lgkmcnt(0)", "s_cmp_lg_u32 s96, 0", "s_cbranch_scc1 Ldbg_skip@", "s_memrealtime s[90:91]", "s_memtime s[88:89]", "s_mov_b64 exec, 1", "v_mov_b32 v0, 0",
            "s_waitcnt lgkmcnt(0)", "s_sub_u32 s90, s90, s92", "s_sub_u32 s88, s88, s98", "v_mov_b32 v2, s90", "v_mov_b32 v3, s88"]
    for j, i in enumerate(keep[:14]):
        post += [f"s_sub_u32 s90, s{52+2*i}, s92", f"v_mov_b32 v{4+j}, s90"]
    for q in range(4): post += [f"global_store_dwordx4 v0, v[{2+4*q}:{5+4*q}], s[94:95] offset:{16*q}"]
    post += ["Ldbg_skip@:", "s_endpgm"]
    out = list(pre); n = 0
    for l in lines:
        if l.strip() == "s_endpgm":
            n += 1; out += [x.replace("@", str(n)) for x in post]
        elif l.startswith(";STAMP"):
            i = int(l.split()[1]); out.append(f"s_memrealtime s[{52+2*i}:{53+2*i}]")
        else: out.append(l)
    return out

def kernel_text(name, asm, vgpr, accum, sgpr=102, stamp=None):
    if isinstance(stamp, list): lines = instrument_dbg(asm.lines, stamp)
    else: lines = [l for l in asm.lines if not l.startswith((";STAMP", ";RSTAMP"))] if stamp is None else instrument(asm.lines, stamp)
    body, nops = pad(lines)
    head = f".globl {name}\n.p2align 8\n.type {name},@function\n{name}:\n"
    kd = (f".amdhsa_kernel {name}\n  .amdhsa_next_free_vgpr {vgpr}\n  .amdhsa_next_free_sgpr {sgpr}\n"
          f"  .amdhsa_accum_offset {accum}\n  .amdhsa_group_segment_fixed_size 0\n  .amdhsa_kernarg_size 112\n"
          f"  .amdhsa_user_sgpr_count 2\n  .amdhsa_user_sgpr_kernarg_segment_ptr 1\n"
          f"  .amdhsa_system_sgpr_workgroup_id_x 1\n  .amdhsa_float_denorm_mode_32 3\n.end_amdhsa_kernel\n")
    return head + "\n".join(body) + "\n", kd, nops
```

```python
import sys, os
sys.path.insert(0, os.path.dirname(os.path.abspath(__file__)))
from emit import *
import common, fused

HEADER = open(os.path.join(os.path.dirname(os.path.abspath(__file__)), "header.txt")).read()

def kernels():
    return [(fused.NAME, fused.gen, fused.GRID, fused.BLOCK, fused.LDS)]

def build(ks=None, extra_launches=(), stamp=False):
    ks = ks or kernels()
    if len(ks) == 1:
        launch = [f"; @launch grid=({g},1,1) block=({b},1,1) lds={l}" for (n, _, g, b, l) in ks]
    else:
        launch = [f"; @launch kernel={n} grid=({g},1,1) block=({b},1,1) lds={l}" for (n, _, g, b, l) in ks]
    launch += list(extra_launches)
    text, kds = [], []
    for i, (n, gen, g, b, l) in enumerate(ks):
        A, vg, ac = gen()
        t, kd, nops = kernel_text(n, A, vg, ac, stamp=(stamp if isinstance(stamp, list) else i) if stamp else None)
        text.append(t); kds.append(kd)
    return (HEADER + "\n".join(launch) + '\n.amdgcn_target "amdgcn-amd-amdhsa--gfx950"\n.text\n' + "".join(text)
            + '.section .rodata,"a"\n' + "".join(".p2align 6\n" + kd for kd in kds))

if __name__ == "__main__":
    out = sys.argv[1] if len(sys.argv) > 1 else "adaLN_cond__grouped_kv_mqa__glu_gated_geglu__prompt.s"
    s_ = build()
    open(out, "w").write(s_)
    Asm.only = ("attn", "post")
    open("stamp.s", "w").write(build(stamp=True))
    open("dbg.s", "w").write(build(stamp=[0, 1, 2, 3, 4, 5, 6, 7, 8, 9, 10, 12, 14, 15]))
    Asm.only = ("front", "attn")
    open("stampf.s", "w").write(build(stamp=True))
    open("dbgf.s", "w").write(build(stamp=[12, 13, 5, 6, 7, 8, 9, 10, 11, 14, 0, 1, 2, 3]))
    print("wrote", out, len(s_))
```

```python
from fcommon import *

SKV, SCNT, SG, SPASS, SDELTA = 34, 35, 36, 37, 39
VL, VL16, VKT, VV, VT0, VT1, VT2 = 1, 2, 3, 4, 5, 6, 7
QM, QT = 8, 24
KM, KT, VF = (28, 28), (32, 32), (36, 36)
PB, OA, SB = 60, 76, 140
TMP = 204
VKA, VT32 = 216, 217
POS = dict(m1=0, pv3=5, m2=11, pv0=17, m3=23, pv1=33, pv2=41)
OPT = dict(k8=False, nomfma=False, novalu=False, prio47=1)
VMASK = "s_mov_b32 exec_lo, 0xfffff\ns_mov_b32 exec_hi, 0xfffff"

def read_k(t): return [f"ds_read_b128 {v(KM[0],4)}, {v(VKA)} offset:{2560*t}", f"ds_read_b64 {v(KT[0],2)}, {v(VKT)} offset:{2560*t}"]
def read_v(t, m): return [VMASK, f"ds_read_b128 {v(VF[0]+4*m,4)}, {v(VV)} offset:{2560*t+640*m}", "s_mov_b64 exec, -1"]

def qk_ops(n):
    kt, p = n >> 1, n & 1
    S = SB + 32*p; b = kt & 1
    m1 = f"v_mfma_f32_32x32x16_bf16 {v(S,16)}, {v(KM[b],4)}, {v(QM+8*p,4)}, 0"
    m2 = f"v_mfma_f32_32x32x16_bf16 {v(S+16,16)}, {v(KM[b],4)}, {v(QM+8*p+4,4)}, 0"
    m3 = f"v_mfma_f32_32x32x4bf16_1k {v(S,32)}, {v(KT[b],2)}, {v(QT+2*p,2)}, {v(S,32)}"
    if OPT["k8"]:
        m3 = [f"v_mfma_f32_32x32x8bf16_1k {v(S+16*j,16)}, {v(KT[b],2)}, {v(QT+2*p,2)}, {v(S+16*j,16)}" for j in range(2)]
    return m1, m2, m3

def pv_op(n, q, first):
    kt, p = n >> 1, n & 1
    o = OA + 16*(2*p + (q >> 1))
    c = "0" if (first and (q & 1) == 0) else v(o, 16)
    return f"v_mfma_f32_32x32x16_bf16 {v(o,16)}, {v(VF[kt&1]+4*(q&1),4)}, {v(PB+4*(q&1),4)}, {c}"

def step(A, n, head=True, sync=None):
    kt, p = n >> 1, n & 1
    t = kt & 1
    S = SB + 32*p
    E = lambda q, e: f"v_exp_f32 {v(S+8*q+e)}, {v(S+8*q+e)}"
    Cv = lambda SS, q, c: f"v_cvt_pk_bf16_f32 {v(PB+4*(q&1)+c)}, {v(SS+8*q+2*c)}, {v(SS+8*q+2*c+1)}"
    va = []
    for q in range(4):
        g = [E(q,0)]
        if q > 0: g.append(Cv(S, q-1, 3))
        elif head: g.append(Cv(SB + 32*(1-p), 3, 3))
        g += [E(q,1), E(q,2), Cv(S,q,0), E(q,3), E(q,4), Cv(S,q,1), E(q,5), E(q,6), Cv(S,q,2), E(q,7)]
        va += g
    m1, m2, m3 = qk_ops(n + 1)
    ins = {}
    def at(pos, *ops): ins.setdefault(pos, []).extend(ops)
    at(POS["m1"], *((["s_waitcnt lgkmcnt(0)"] if p == 1 else []) + [m1]))
    if head:
        at(POS["pv3"], pv_op(n - 1, 3, n - 1 < 2))
        if p == 0: at(POS["pv3"], *read_v(t, 1))
    at(POS["m2"], m2)
    at(POS["pv0"], *((["s_waitcnt lgkmcnt(1)"] if p == 0 and head else []) + [pv_op(n, 0, n < 2)]))
    at(POS["m3"], m3)
    if p == 0:
        if t == 1: at(POS["m3"], sync)
        at(POS["m3"], *read_k(1 - t))
    at(POS["pv1"], *((["s_waitcnt lgkmcnt(2)"] if p == 0 else []) + [pv_op(n, 1, n < 2)]))
    at(POS["pv2"], pv_op(n, 2, n < 2))
    if p == 1: at(POS["pv2"], *read_v(1 - t, 0))
    for i, op in enumerate(va):
        for x in ins.pop(i, []):
            if callable(x): x(A)
            elif not (OPT["nomfma"] and x.startswith("v_mfma")): A(x)
        if not OPT["novalu"]: A(op)
    assert not ins

def tail(A, n):
    p = n & 1
    S = SB + 32*p
    A("s_nop 0")
    A(f"v_cvt_pk_bf16_f32 {v(PB+7)}, {v(S+30)}, {v(S+31)}")
    A(pv_op(n, 3, False))

def read_q(A):
    A(f"v_lshrrev_b32 {v(VT0)}, 2, v0\nv_and_b32 {v(VT0)}, 64, {v(VT0)}")
    A(f"v_lshlrev_b32 {v(VT1)}, 6, {v(VT0)}\nv_add_u32 {v(VT1)}, {v(VT1)}, {v(VL16)}")
    A(f"v_lshlrev_b32 {v(VT2)}, 4, {v(VT0)}\nv_lshl_add_u32 {v(VT2)}, {v(VL)}, 3, {v(VT2)}")
    A(f"v_add_u32 {v(VT1)}, {L_QM}, {v(VT1)}\nv_add_u32 {v(VT2)}, {L_QT}, {v(VT2)}")
    for h in range(4): A(f"ds_read_b128 {v(QM+4*h,4)}, {v(VT1)} offset:{1024*h}")
    for p in range(2): A(f"ds_read_b64 {v(QT+2*p,2)}, {v(VT2)} offset:{512*p}")

def lane_setup(A):
    A(f"s_and_b32 s28, {s(SW)}, 3\ns_mul_i32 s28, s28, 5120")
    A(f"v_and_b32 {v(VT0)}, 31, {v(VL)}\nv_lshlrev_b32 {v(VT32)}, 3, {v(VT0)}")
    A(f"v_add_u32 {v(VKA)}, s28, {v(VL16)}\ns_add_u32 s29, s28, 1024\nv_add_u32 {v(VKT)}, s29, {v(VT32)}")
    A(f"v_lshrrev_b32 {v(VT1)}, 5, {v(VL)}\nv_mul_u32_u24 {v(VT1)}, 320, {v(VT1)}\nv_lshl_add_u32 {v(VV)}, {v(VT0)}, 4, {v(VT1)}\ns_add_u32 s29, s28, 1280\nv_add_u32 {v(VV)}, s29, {v(VV)}")
    A(f"v_mov_b32 {v(VT1)}, 0x3f803f80\nv_cmp_eq_u32 vcc, 20, {v(VT0)}\nv_cndmask_b32 {v(VF[0])}, 0, {v(VT1)}, vcc")
    for r in range(1, 8): A(f"v_mov_b32 {v(VF[0]+r)}, {v(VF[0])}")

def qaddr(A, QADR, t):
    A(f"s_and_b32 s29, {s(SW)}, 1\ns_lshl_b32 s29, s29, 4\nv_and_b32 {v(t[0])}, 15, {v(VL)}\nv_add_u32 {v(t[0])}, s29, {v(t[0])}")
    A(f"v_lshrrev_b32 {v(t[1])}, 4, {v(VL)}")
    A(f"s_bfe_u32 s29, {s(SW)}, 0x10001\ns_lshl_b32 s30, s29, 12\ns_add_u32 s30, s30, {L_QM}\ns_lshl_b32 s29, s29, 10\ns_add_u32 s29, s29, {L_QT}")
    for i in range(5):
        A(f"v_add_u32 {v(t[2])}, {4*i}, {v(t[1])}\nv_mul_u32_u24 {v(t[3])}, 13, {v(t[2])}\nv_lshrrev_b32 {v(t[3])}, 6, {v(t[3])}")
        A(f"v_mul_u32_u24 {v(t[4])}, 5, {v(t[3])}\nv_sub_u32 {v(t[2])}, {v(t[2])}, {v(t[4])}")
        A(f"v_lshlrev_b32 {v(t[4])}, 10, {v(t[3])}\nv_lshrrev_b32 {v(t[5])}, 1, {v(t[2])}\nv_lshl_add_u32 {v(t[4])}, {v(t[5])}, 9, {v(t[4])}")
        A(f"v_lshl_add_u32 {v(t[4])}, {v(t[0])}, 4, {v(t[4])}\nv_and_b32 {v(t[5])}, 1, {v(t[2])}\nv_lshl_add_u32 {v(t[4])}, {v(t[5])}, 3, {v(t[4])}")
        A(f"v_add_u32 {v(t[4])}, s30, {v(t[4])}")
        A(f"v_lshlrev_b32 {v(t[5])}, 8, {v(t[3])}\nv_lshl_add_u32 {v(t[5])}, {v(t[0])}, 3, {v(t[5])}\nv_add_u32 {v(t[5])}, s29, {v(t[5])}")
        A(f"v_cmp_eq_u32 vcc, 4, {v(t[2])}\nv_cndmask_b32 {v(QADR+i)}, {v(t[4])}, {v(t[5])}, vcc")

def qwrite(A, QACC, QADR, T):
    A(f"s_mov_b32 s29, {fbits(20**-0.5 * 1.4426950408889634)}")
    for r in range(20): A(f"v_mul_f32 {v(QACC+r)}, s29, {v(QACC+r)}")
    for i in range(5):
        A(f"v_cvt_pk_bf16_f32 {v(T+2*i)}, {v(QACC+4*i)}, {v(QACC+4*i+1)}\nv_cvt_pk_bf16_f32 {v(T+1+2*i)}, {v(QACC+4*i+2)}, {v(QACC+4*i+3)}")
        A(f"ds_write_b64 {v(QADR+i)}, {v(T+2*i,2)}")

def attention(A, first_block, blocks):
    A(f"s_mov_b32 {s(SPASS)}, 0")
    lane_setup(A)
    load_xids(A, 28, VT0, TMP, VL)
    read_q(A)
    A(f"s_cmp_lt_u32 {s(SW)}, 4\ns_cbranch_scc1 Lk2_go")
    if OPT["prio47"]: A(f"s_setprio {OPT['prio47']}")
    first_block(A)
    eval_mode(A, TMP)
    A.label("Lk2_go")
    A("s_barrier")
    A.stamp(0)
    for x in read_k(0) + read_v(0, 0) + read_v(0, 1): A(x)
    A("s_waitcnt lgkmcnt(0)")
    for m in qk_ops(0): A(m)
    A(f"s_mov_b32 {s(SCNT)}, 0")
    def sync(tagc):
        def f(A):
            A(f"s_cmp_ge_u32 {s(SW)}, 4\ns_cbranch_scc1 Lk2_blk")
            A("s_waitcnt lgkmcnt(0)\ns_barrier")
            A.label(f"Lk2_ret{tagc}")
            A(f"s_and_b32 s28, {s(SCNT)}, 3\ns_cmp_eq_u32 s28, 3\ns_mov_b32 {s(SDELTA)}, 20480\ns_cselect_b32 {s(SDELTA)}, {-61440 & 0xffffffff}, {s(SDELTA)}")
            for r in (VKA, VKT, VV): A(f"v_add_u32 {v(r)}, {s(SDELTA)}, {v(r)}")
            A(f"s_add_u32 {s(SCNT)}, {s(SCNT)}, 1")
        return f
    step(A, 0, head=False); step(A, 1); step(A, 2, sync=sync(0)); step(A, 3)
    A.stamp(1)
    A(".p2align 3")
    A.label("Lk2_loop")
    for n in (4, 5, 6, 7): step(A, n, sync=sync(1))
    A(f"s_cmp_lg_u32 {s(SCNT)}, 8\ns_cbranch_scc1 Lk2_loop")
    tail(A, 7)
    A(f"s_cmp_ge_u32 {s(SW)}, 4\ns_cbranch_scc1 Lk2_moded\ns_waitcnt vmcnt(0)")
    eval_mode(A, TMP)
    A.label("Lk2_moded")
    A.stamp(2)
    A.label("Lk2_red")
    A(f"s_and_b32 s28, {s(SW)}, 3\ns_lshl_b32 s28, s28, 1\ns_lshr_b32 s29, {s(SW)}, 2\ns_add_u32 s28, s28, s29\ns_mul_i32 s28, s28, 12288")
    A(f"v_add_u32 {v(VT0)}, s28, {v(VL16)}")
    for h in range(4):
        for q in range(3): A(f"ds_write_b128 {v(VT0)}, {v(OA+16*h+4*q,4)} offset:{3072*h+1024*q}")
    A(f"v_lshrrev_b32 {v(VT1)}, 5, {v(VL)}\nv_mul_u32_u24 {v(VT1)}, 12288, {v(VT1)}\nv_lshl_add_u32 {v(VT1)}, {v(VT32)}, 1, {v(VT1)}")
    A(f"v_lshrrev_b32 {v(VT2)}, 4, {v(VL)}\nv_mul_u32_u24 {v(VT2)}, 20480, {v(VT2)}\nv_and_b32 {v(TMP)}, 15, {v(VL)}\nv_lshl_add_u32 {v(VT2)}, {v(TMP)}, 4, {v(VT2)}")
    A(f"s_mov_b32 {s(SG)}, {s(SW)}")
    A(f"s_mov_b32 s38, 0x1f800000\nv_mov_b32 {v(TMP+1)}, 0x5f800000")
    A("s_waitcnt lgkmcnt(0)\ns_barrier")
    A.stamp(3)
    A.label("Lk2_item")
    R0, LR = 60, 100
    for e in range(2):
        A(f"s_lshl_b32 s28, {s(SG)}, 1\ns_add_u32 s28, s28, {e}\ns_mul_i32 s29, s28, 13\ns_lshr_b32 s29, s29, 6")
        A("s_mul_i32 s30, s29, 5\ns_sub_u32 s30, s28, s30\ns_mul_i32 s29, s29, 3072\ns_lshl_b32 s30, s30, 9\ns_add_u32 s30, s30, s29")
        A(f"v_add_u32 {v(TMP+2)}, s30, {v(VT1)}\nv_add_u32 {v(TMP+3)}, 49152, {v(TMP+2)}")
        A(f"v_add_u32 {v(TMP+4)}, s29, {v(VT1)}\nv_add_u32 {v(TMP+5)}, 49152, {v(TMP+4)}")
        for kq in range(4):
            A(f"ds_read_b128 {v(R0+16*e+4*kq,4)}, {v(TMP+2+(kq>>1))} offset:{24576*(kq&1)}")
            A(f"ds_read_b32 {v(LR+4*e+kq)}, {v(TMP+4+(kq>>1))} offset:{24576*(kq&1)+2560}")
    A(f"s_mul_i32 s28, {s(STG)}, 81920\ns_mul_i32 s29, {s(SNG)}, 10\ns_add_u32 s29, s29, {s(SG)}\ns_lshl_b32 s29, s29, 8\ns_add_u32 s28, s28, s29\ns_add_u32 s28, s28, {WS_O}")
    for e in range(2):
        A(f"s_waitcnt lgkmcnt({8*(1-e)})")
        L = LR + 4*e; R = R0 + 16*e
        A(f"v_add_f32 {v(L)}, {v(L)}, {v(L+1)}\nv_add_f32 {v(L+2)}, {v(L+2)}, {v(L+3)}\nv_add_f32 {v(L)}, {v(L)}, {v(L+2)}")
        A(f"v_rcp_f32 {v(L+1)}, {v(L)}")
        A(f"v_med3_f32 {v(L+2)}, {v(L)}, s38, {v(TMP+1)}")
        A(f"v_cmp_neq_f32 {'vcc' if e == 0 else 's[30:31]'}, {v(L+2)}, {v(L)}")
        for r in range(4):
            A(f"v_add_f32 {v(R+r)}, {v(R+r)}, {v(R+4+r)}\nv_add_f32 {v(R+8+r)}, {v(R+8+r)}, {v(R+12+r)}")
        for r in range(4):
            A(f"v_add_f32 {v(R+r)}, {v(R+r)}, {v(R+8+r)}")
        for r in range(4):
            A(f"v_mul_f32 {v(R+r)}, {v(R+r)}, {v(L+1)}")
        A(f"v_cvt_pk_bf16_f32 {v(108+2*e)}, {v(R)}, {v(R+1)}\nv_cvt_pk_bf16_f32 {v(109+2*e)}, {v(R+2)}, {v(R+3)}")
    A(f"buffer_store_dwordx4 v[108:111], {v(VT2)}, {s(SRD_WS,4)}, s28 offen{SC}")
    A("s_or_b64 vcc, vcc, s[30:31]")
    A("s_cbranch_vccz Lk2_ok")
    A(f"v_mov_b32 {v(TMP+2)}, {L_FLAG}\nv_mov_b32 {v(TMP+3)}, 1\nds_write_b32 {v(TMP+2)}, {v(TMP+3)}")
    A.label("Lk2_ok")
    A(f"s_add_u32 {s(SG)}, {s(SG)}, 8\ns_cmp_lt_u32 {s(SG)}, 10\ns_cbranch_scc1 Lk2_item")
    A("s_waitcnt lgkmcnt(0)\ns_barrier")
    A(f"s_cmp_lg_u32 {s(SPASS)}, 0\ns_cbranch_scc1 Lk2_done")
    A(f"v_mov_b32 {v(TMP+2)}, {L_FLAG}\nds_read_b32 {v(TMP+3)}, {v(TMP+2)}\ns_waitcnt lgkmcnt(0)")
    A(f"v_readfirstlane_b32 s28, {v(TMP+3)}\ns_cmp_eq_u32 s28, 0\ns_cbranch_scc1 Lk2_done")
    slow_path(A)
    A.label("Lk2_blk")
    for c in range(1, 8): A(f"s_cmp_eq_u32 {s(SCNT)}, {c}\ns_cbranch_scc1 Lk2_blk{c}")
    for c in range(8):
        A.label(f"Lk2_blk{c}")
        blocks(A, c)
        A(f"s_branch Lk2_ret{min(c, 1)}")
    A.label("Lk2_done")
    A("s_setprio 0")
    A.vm_drain()
    A(f"s_lshl_b32 s25, {s(STG)}, 6\ns_lshl_b32 s26, {s(SNG)}, 3\ns_add_u32 s25, s25, s26\ns_add_u32 s25, s25, {s(SW)}\ns_lshl_b32 s25, s25, 2\ns_add_u32 s25, s25, {SY_FL2}")
    set_flag(A, "s25", VT0, VT1)
    A.stamp(4)


def slow_path(A):
    A(f"s_mov_b32 {s(SPASS)}, 1")
    A("s_waitcnt vmcnt(0)")
    A(f"v_lshrrev_b32 {v(VV)}, 5, {v(VL)}\nv_mul_u32_u24 {v(VV)}, 320, {v(VV)}\nv_lshl_add_u32 {v(VV)}, {v(VT32)}, 1, {v(VV)}")
    K8 = 204
    MX = 212
    A(f"v_lshrrev_b32 {v(VT0)}, 2, v0\nv_and_b32 {v(VT0)}, 64, {v(VT0)}\nv_lshlrev_b32 {v(VT0)}, 4, {v(VT0)}")
    A(f"v_add_u32 {v(VT0)}, {v(VT0)}, {v(VT32)}\nv_add_u32 {v(VT0)}, {L_QT}, {v(VT0)}")
    for h in range(4): A(f"ds_read_b64 {v(K8+2*h,2)}, {v(VT0)} offset:{256*h}")
    A(f"v_cmp_gt_u32 s[32:33], 32, {v(VL)}")
    A("s_waitcnt lgkmcnt(0)")
    for r in range(8): A(f"v_cndmask_b32 {v(K8+r)}, 0, {v(K8+r)}, s[32:33]")
    def ktile(A, with_v):
        A(f"buffer_load_dwordx4 {v(KM[0],4)}, {v(VL16)}, {s(SRD_WS,4)}, {s(SKV)} offen{SC}")
        A(f"buffer_load_dwordx2 {v(KT[0],2)}, {v(VT32)}, {s(SRD_WS,4)}, {s(SKV)} offen offset:1024{SC}")
        if with_v:
            A(VMASK)
            for m in range(2): A(f"buffer_load_dwordx4 {v(VF[0]+4*m,4)}, {v(VV)}, {s(SRD_WS,4)}, {s(SKV)} offen offset:{1280+640*m}{SC}")
            A("s_mov_b64 exec, -1")
        A(f"s_bitcmp1_b32 {s(SCNT)}, 0\ns_mov_b32 s28, 2560\ns_cselect_b32 s28, 17920, s28\ns_add_u32 {s(SKV)}, {s(SKV)}, s28")
        A(f"v_mov_b32 {v(VT1)}, 0x3f803f80")
        A("s_waitcnt vmcnt(0)")
        A(f"v_cndmask_b32 {v(KT[0])}, {v(VT1)}, {v(KT[0])}, s[32:33]\nv_cndmask_b32 {v(KT[0]+1)}, 0, {v(KT[0]+1)}, s[32:33]")
    def scores(A, h):
        A(f"v_mfma_f32_32x32x16_bf16 {v(SB,16)}, {v(KM[0],4)}, {v(QM+4*h,4)}, 0")
        A(f"v_mfma_f32_32x32x8bf16_1k {v(SB,16)}, {v(KT[0],2)}, {v(K8+2*h,2)}, {v(SB,16)}")
    for h in range(4): A(f"v_mov_b32 {v(MX+h)}, 0xff800000")
    A(f"s_and_b32 {s(SKV)}, {s(SW)}, 3\ns_mul_i32 {s(SKV)}, {s(SKV)}, 5120\ns_add_u32 {s(SKV)}, {s(SKV)}, {WS_KV3}")
    A(f"s_mov_b32 {s(SCNT)}, 16")
    A.label("Lk2_max")
    ktile(A, False)
    for h in range(4):
        scores(A, h)
        for r in range(0, 16, 2): A(f"v_max3_f32 {v(MX+h)}, {v(SB+r)}, {v(SB+r+1)}, {v(MX+h)}")
    A(f"s_sub_u32 {s(SCNT)}, {s(SCNT)}, 1\ns_cmp_lg_u32 {s(SCNT)}, 0\ns_cbranch_scc1 Lk2_max")
    A(f"v_lshrrev_b32 {v(VT0)}, 2, v0\nv_and_b32 {v(VT0)}, 64, {v(VT0)}\nv_lshlrev_b32 {v(VT0)}, 6, {v(VT0)}")
    A(f"v_lshl_add_u32 {v(VT0)}, {v(VT32)}, 2, {v(VT0)}")
    A(f"v_lshrrev_b32 {v(VT1)}, 5, {v(VL)}\ns_and_b32 s28, {s(SW)}, 3\ns_lshl_b32 s28, s28, 3\nv_lshl_add_u32 {v(VT1)}, {v(VT1)}, 2, s28\nv_add_u32 {v(VT1)}, {v(VT0)}, {v(VT1)}")
    for h in range(4): A(f"ds_write_b32 {v(VT1)}, {v(MX+h)} offset:{1024*h}")
    A("s_waitcnt lgkmcnt(0)\ns_barrier")
    for h in range(4):
        A(f"ds_read_b128 {v(SB,4)}, {v(VT0)} offset:{1024*h}\nds_read_b128 {v(SB+4,4)}, {v(VT0)} offset:{1024*h+16}\ns_waitcnt lgkmcnt(0)")
        A(f"v_max3_f32 {v(SB)}, {v(SB)}, {v(SB+1)}, {v(SB+2)}\nv_max3_f32 {v(SB)}, {v(SB)}, {v(SB+3)}, {v(SB+4)}")
        A(f"v_max3_f32 {v(SB)}, {v(SB)}, {v(SB+5)}, {v(SB+6)}\nv_max_f32 {v(SB)}, {v(SB)}, {v(SB+7)}")
        A(f"v_sub_f32 {v(SB)}, 0, {v(SB)}\nv_cvt_pk_bf16_f32 {v(SB+1)}, {v(SB)}, {v(SB)}\nv_and_b32 {v(SB+1)}, 0xffff0000, {v(SB+1)}")
        A(f"v_sub_f32 {v(SB+2)}, {v(SB)}, {v(SB+1)}\nv_cvt_pk_bf16_f32 {v(SB+1)}, {v(SB+1)}, {v(SB+2)}")
        A(f"v_cndmask_b32 {v(K8+2*h)}, {v(SB+1)}, {v(K8+2*h)}, s[32:33]")
    for r in range(64): A(f"v_mov_b32 {v(OA+r)}, 0")
    A("s_barrier")
    A(f"s_and_b32 {s(SKV)}, {s(SW)}, 3\ns_mul_i32 {s(SKV)}, {s(SKV)}, 5120\ns_add_u32 {s(SKV)}, {s(SKV)}, {WS_KV3}")
    A(f"s_mov_b32 {s(SCNT)}, 16")
    A.label("Lk2_slow")
    ktile(A, True)
    for h in range(4):
        scores(A, h)
        for r in range(16): A(f"v_exp_f32 {v(SB+r)}, {v(SB+r)}")
        for r in range(8): A(f"v_cvt_pk_bf16_f32 {v(PB+r)}, {v(SB+2*r)}, {v(SB+2*r+1)}")
        for m in range(2):
            A(f"v_mfma_f32_32x32x16_bf16 {v(OA+16*h,16)}, {v(VF[0]+4*m,4)}, {v(PB+4*m,4)}, {v(OA+16*h,16)}")
    A(f"s_sub_u32 {s(SCNT)}, {s(SCNT)}, 1\ns_cmp_lg_u32 {s(SCNT)}, 0\ns_cbranch_scc1 Lk2_slow")
    A("s_branch Lk2_red")
```

```python
from common import *
import struct
def fbits(x): return "0x%08x" % struct.unpack("<I", struct.pack("<f", x))[0]

WS_SYNC  = 0x17A8000
SY_EPOCH = WS_SYNC
SY_XID   = WS_SYNC + 0x100
SY_FLP   = WS_SYNC + 0x800
SY_FL2   = WS_SYNC + 0x1000
SY_FL3   = WS_SYNC + 0x3000
SY_FL4   = WS_SYNC + 0x5000
SY_FL1   = WS_SYNC + 0x9000
SY_MODG  = WS_SYNC + 0x11000
WS_KV3   = WS_SYNC + 0x1A000
WS_TOP   = WS_KV3 + 64 * 2560

SLOT = 20480
L_XTRA = 7 * SLOT
L_MISC = L_XTRA + 6144
L_QM, L_QT = L_MISC, L_MISC + 8192
L_X1 = L_MISC
L_FLAG = L_MISC + 10240
LDS_ALL = 163840
def slot_of(n): return ((n + 5) % 7) * SLOT

SW, STG, SNG, SFB, STAG = 3, 20, 21, 22, 23
SMODE, SXCC = 41, 42
SRD_WS, SRD_X, SRD_OUT = 8, 12, 16
SPIN = 1 << 20
SC = " sc1"

def ids(A):
    A(f"s_and_b32 {s(STG)}, s2, 7\ns_lshl_b32 {s(STG)}, {s(STG)}, 2\ns_lshr_b32 {s(SNG)}, s2, 6\ns_add_u32 {s(STG)}, {s(STG)}, {s(SNG)}")
    A(f"s_bfe_u32 {s(SNG)}, s2, 0x30003")
    A(f"s_and_b32 {s(SFB)}, {s(STG)}, 1\ns_lshl_b32 {s(SFB)}, {s(SFB)}, 3\ns_add_u32 {s(SFB)}, {s(SFB)}, {s(SNG)}")

def read_epoch(A, ptr, tmp):
    A(f"s_add_u32 {s(tmp)}, {s(ptr)}, {SY_EPOCH}\ns_addc_u32 {s(tmp+1)}, {s(ptr+1)}, 0")
    A(f"s_load_dword {s(STAG)}, {s(tmp,2)}, 0")
def epoch_to_tag(A):
    A(f"s_mul_i32 {s(STAG)}, {s(STAG)}, 1664525\ns_add_u32 {s(STAG)}, {s(STAG)}, 1013904223")
    A(f"s_getreg_b32 {s(SXCC)}, hwreg(HW_REG_XCC_ID, 0, 4)\ns_add_u32 {s(SXCC)}, {s(SXCC)}, {s(STAG)}")

def set_flag(A, soff, vt0, vt1, local=True):
    A(f"s_mov_b64 exec, 1\nv_mov_b32 {v(vt0)}, 0\nv_mov_b32 {v(vt1)}, {s(STAG)}")
    if local:
        Ls = A.newlabel("flsafe"); Ld = A.newlabel("fldone")
        A(f"s_cmp_eq_u32 {s(SMODE)}, 0\ns_cbranch_scc1 {Ls}")
        A(f"buffer_store_dword {v(vt1)}, {v(vt0)}, {s(SRD_WS,4)}, {soff} offen")
        A(f"s_branch {Ld}")
        A.label(Ls)
    A.vmem(f"buffer_store_dword {v(vt1)}, {v(vt0)}, {s(SRD_WS,4)}, {soff} offen{SC}", "flag")
    if local: A.label(Ld)
    A("s_mov_b64 exec, -1")

def xid_addr(A, sdst):
    A(f"s_lshr_b32 {s(sdst)}, {s(STG)}, 1\ns_lshl_b32 {s(sdst)}, {s(sdst)}, 6\ns_add_u32 {s(sdst)}, {s(sdst)}, {SY_XID}")
def publish_xid(A, st, vt0, vt1):
    L = A.newlabel("noxid")
    A(f"s_cmp_lg_u32 {s(SW)}, 4\ns_cbranch_scc1 {L}")
    xid_addr(A, st)
    A(f"s_lshl_b32 {s(st+1)}, {s(SFB)}, 2\ns_add_u32 {s(st)}, {s(st)}, {s(st+1)}")
    A(f"s_mov_b64 exec, 1\nv_mov_b32 {v(vt0)}, 0\nv_mov_b32 {v(vt1)}, {s(SXCC)}")
    A(f"buffer_store_dword {v(vt1)}, {v(vt0)}, {s(SRD_WS,4)}, {s(st)} offen{SC}\ns_mov_b64 exec, -1")
    A.label(L)
def load_xids(A, st, vt0, vdst, vlane):
    xid_addr(A, st)
    A(f"v_and_b32 {v(vt0)}, 15, {v(vlane)}\nv_lshlrev_b32 {v(vt0)}, 2, {v(vt0)}")
    A(f"buffer_load_dword {v(vdst)}, {v(vt0)}, {s(SRD_WS,4)}, {s(st)} offen{SC}")
def eval_mode(A, vdst):
    A(f"v_cmp_ne_u32 vcc, {s(SXCC)}, {v(vdst)}\ns_cmp_eq_u64 vcc, 0\ns_cselect_b32 {s(SMODE)}, 1, 0")

def l2_touch(A, soff, vaddr128, vdst, n, stmp):
    for i in range(n):
        if i: A(f"s_add_u32 {soff}, {soff}, 8192")
        A(f"buffer_load_dword {v(vdst)}, {v(vaddr128)}, {s(SRD_WS,4)}, {soff} offen")

def poll_flags(A, n, vaddr, vt, soff, scnt, first_loaded=False):
    L = A.newlabel("poll"); Ld = A.newlabel("polled"); Lc = A.newlabel("pollchk")
    if n < 64: A(f"s_mov_b32 exec_lo, {hex(((1 << n) - 1) & 0xffffffff)}\ns_mov_b32 exec_hi, {hex(((1 << n) - 1) >> 32)}")
    A(f"s_mov_b32 {s(scnt)}, {SPIN}")
    if first_loaded: A(f"s_branch {Lc}")
    A.label(L)
    A(f"buffer_load_dword {v(vt)}, {v(vaddr)}, {s(SRD_WS,4)}, {soff} offen{SC}")
    A.label(Lc)
    A("s_waitcnt vmcnt(0)")
    A(f"v_cmp_ne_u32 vcc, {s(STAG)}, {v(vt)}")
    A(f"s_cbranch_vccz {Ld}")
    A(f"s_sleep 1\ns_sub_u32 {s(scnt)}, {s(scnt)}, 1\ns_cmp_lg_u32 {s(scnt)}, 0\ns_cbranch_scc1 {L}")
    A.label(Ld)
    if n < 64: A("s_mov_b64 exec, -1")
    A.vm_reset()
```

```python
from fcommon import *
import attn

VL, VL16 = 1, 2
SRD_A, SRD_B = 16, 48
SM, SE, SSTRIP, SW4 = 44, 45, 46, 43
L_WQ, L_WKV, L_MODSA, L_LNX, L_KVRED = 0, 102400, 128000, 133120, 134144
L_SILU, L_MSTAGE = 138240, 143360
L_QRED = 102400
L_SILU2 = L_FLAG + 1024
L_CNT = L_FLAG + 16
OPT = dict(nq1=13, flag_ks=6, touch=2)

def job_ids(A):
    A(f"s_lshr_b32 {s(SM)}, s2, 5\ns_lshl_b32 {s(SM)}, {s(SM)}, 3\ns_and_b32 s25, s2, 7\ns_add_u32 {s(SM)}, {s(SM)}, s25")
    A(f"s_bfe_u32 {s(SE)}, s2, 0x20003\ns_lshl_b32 {s(SSTRIP)}, {s(SM)}, 2\ns_add_u32 {s(SSTRIP)}, {s(SSTRIP)}, {s(SE)}")

def srd_from_kernarg(A, srd, name):
    A(f"s_load_dwordx2 {s(srd,2)}, s[0:1], {KA[name]}")
    A(f"s_mov_b32 {s(srd+2)}, {NBYTES[name]}\ns_mov_b32 {s(srd+3)}, 0x20000")

def mod_issue(A, stage, R, f0=0, f1=20):
    if f0 == 0:
        A.vmem(f"buffer_load_dwordx4 {v(R,4)}, {v(VL16)}, {s(SRD_B,4)}, 0 offen", "c")
        A.vmem(f"buffer_load_dwordx4 {v(R+4,4)}, {v(VL16)}, {s(SRD_B,4)}, 0 offen offset:1024", "c")
        f16_src_voffset(A, R+8, VL, 7680, R+9, R+10)
        A(f"s_lshl_b32 s25, {s(SSTRIP)}, 5")
    for f in range(f0, f1):
        dma(A, R+8, SRD_A, "s25", None, stage + f*1024, f"m{f//5}")
        if f < 19: A(f"s_add_u32 s25, s25, {32*7680}")

def mod_finish(A, stage, silu, R):
    F, T = R+12, R+28
    A.vm_wait("c")
    for r in range(8):
        unpack_lo(A, F+2*r, R+r); unpack_hi(A, F+2*r+1, R+r)
    A("s_mov_b32 s25, 0xbfb8aa3b")
    for i in range(16): A(f"v_mul_f32 {v(T+i)}, s25, {v(F+i)}")
    for i in range(16): A(f"v_exp_f32 {v(T+i)}, {v(T+i)}")
    for i in range(16): A(f"v_add_f32 {v(T+i)}, 1.0, {v(T+i)}")
    for i in range(16): A(f"v_rcp_f32 {v(T+i)}, {v(T+i)}")
    for i in range(16): A(f"v_mul_f32 {v(F+i)}, {v(F+i)}, {v(T+i)}")
    for r in range(8): A(f"v_cvt_pk_bf16_f32 {v(R+r)}, {v(F+2*r)}, {v(F+2*r+1)}")
    A(f"v_add_u32 {v(R+8)}, {silu}, {v(VL16)}")
    A(f"ds_write_b128 {v(R+8)}, {v(R,4)}\nds_write_b128 {v(R+8)}, {v(R+4,4)} offset:1024")
    A(f"v_lshrrev_b32 {v(R+9)}, 4, {v(VL)}\nv_lshlrev_b32 {v(R+9)}, 4, {v(R+9)}\nv_add_u32 {v(R+9)}, {silu}, {v(R+9)}")
    A(f"v_lshlrev_b32 {v(R+10)}, 3, {v(VL)}\nv_add_u32 {v(R+10)}, {stage}, {v(R+10)}")
    A("s_waitcnt lgkmcnt(0)")
    B, W, ACC = R+12, R+52, R
    def reads(q):
        o = 20*(q & 1)
        for f in range(5): A(f"ds_read_b128 {v(B+o+4*f,4)}, {v(R+9)} offset:{(5*q+f)*64}")
        A.vm_wait(f"m{q}")
        for f in range(5):
            A(f"ds_read_b64_tr_b16 {v(W+o+4*f,2)}, {v(R+10)} offset:{(5*q+f)*1024}")
            A(f"ds_read_b64_tr_b16 {v(W+o+4*f+2,2)}, {v(R+10)} offset:{(5*q+f)*1024+512}")
    reads(0)
    for q in range(4):
        if q < 3: reads(q+1)
        A(f"s_waitcnt lgkmcnt({15 if q < 3 else 0})")
        o = 20*(q & 1)
        for f in range(5):
            A(f"v_mfma_f32_16x16x32_bf16 {v(ACC,4)}, {v(W+o+4*f,4)}, {v(B+o+4*f,4)}, {'0' if q == 0 and f == 0 else v(ACC,4)}")
    mod_publish(A, ACC, R+4, R+9)

def mod_publish(A, ACC, P, VT):
    A(f"v_cvt_pk_bf16_f32 {v(P)}, {v(ACC)}, {v(ACC+1)}\nv_cvt_pk_bf16_f32 {v(P+2)}, {v(ACC+2)}, {v(ACC+3)}")
    L = A.newlabel("noone")
    A(f"s_mul_i32 s30, {s(SSTRIP)}, 1639\ns_lshr_b32 s30, s30, 16\ns_cmp_eq_u32 s30, 1\ns_cselect_b32 s31, 1, 0\ns_cmp_eq_u32 s30, 4\ns_cselect_b32 s31, 1, s31")
    A(f"s_cmp_eq_u32 s31, 0\ns_cbranch_scc1 {L}")
    for q in (0, 2):
        unpack_lo(A, ACC, P+q); unpack_hi(A, ACC+1, P+q)
        A(f"v_add_f32 {v(ACC)}, 1.0, {v(ACC)}\nv_add_f32 {v(ACC+1)}, 1.0, {v(ACC+1)}\nv_cvt_pk_bf16_f32 {v(P+q)}, {v(ACC)}, {v(ACC+1)}")
    A.label(L)
    A(f"v_mov_b32 {v(P+1)}, {s(STAG)}\nv_mov_b32 {v(P+3)}, {s(STAG)}")
    A(f"s_lshl_b32 s30, {s(SSTRIP)}, 7\ns_add_u32 s30, s30, {SY_MODG}\nv_and_b32 {v(VT)}, 48, {v(VL)}")
    A("s_mov_b32 exec_lo, 0x10001\ns_mov_b32 exec_hi, 0x10001")
    A(f"buffer_store_dwordx4 {v(P,4)}, {v(VT)}, {s(SRD_WS,4)}, s30 offen{SC}")
    A("s_mov_b64 exec, -1")

def set_exec(A, ex):
    m = int(ex, 16)
    A(f"s_mov_b32 exec_lo, {hex(m & 0xffffffff)}\ns_mov_b32 exec_hi, {hex(m >> 32)}")

def poll_granules(A, loads, scnt):
    L = A.newlabel("gpoll"); Ld = A.newlabel("gdone")
    A(f"s_mov_b32 {s(scnt)}, {SPIN}")
    A.label(L)
    for (d, va, so, ex, imm) in loads:
        if ex: set_exec(A, ex)
        A(f"buffer_load_dwordx4 {v(d,4)}, {v(va)}, {s(SRD_WS,4)}, {so} offen offset:{imm}{SC}")
        if ex: A("s_mov_b64 exec, -1")
    A("s_waitcnt vmcnt(0)\ns_mov_b64 s[30:31], 0")
    for (d, va, so, ex, imm) in loads:
        if ex: set_exec(A, ex)
        for q in (1, 3):
            A(f"v_cmp_ne_u32 vcc, {s(STAG)}, {v(d+q)}\ns_or_b64 s[30:31], s[30:31], vcc")
        if ex: A("s_mov_b64 exec, -1")
    A(f"s_cmp_eq_u64 s[30:31], 0\ns_cbranch_scc1 {Ld}")
    A(f"s_sleep 2\ns_sub_u32 {s(scnt)}, {s(scnt)}, 1\ns_cmp_lg_u32 {s(scnt)}, 0\ns_cbranch_scc1 {L}")
    A.label(Ld)
    A.vm_reset()

X, XN, MS, AF, QACC, KVACC, ONES, QADR = 16, 56, 136, 168, 216, 236, 244, 248
T0, T1, T2, T3, VTR, VTK, VSRC = 4, 5, 6, 7, 8, 9, 10

def front(A):
    Lnm, Lw47, Lj1 = A.newlabel("nomod"), A.newlabel("w47"), A.newlabel("j1")
    A.vm_reset()
    A(f"s_and_b32 s26, {s(SW)}, 3\ns_lshr_b32 s27, {s(SW)}, 2")
    A(f"v_and_b32 {v(T0)}, 15, {v(VL)}\nv_mul_u32_u24 {v(T0)}, 1280, {v(T0)}\nv_lshrrev_b32 {v(T1)}, 4, {v(VL)}\nv_lshl_add_u32 {v(T0)}, {v(T1)}, 4, {v(T0)}")
    A(f"s_lshl_b32 s28, {s(STG)}, 2\ns_add_u32 s28, s28, s26\ns_mul_i32 s28, s28, 20480\ns_mul_i32 s29, s27, 640\ns_add_u32 s28, s28, s29")
    A(f"s_cmp_lg_u32 {s(SW)}, 0\ns_cbranch_scc1 {Lnm}\ns_cmp_ge_u32 {s(SM)}, 20\ns_cbranch_scc1 {Lnm}")
    mod_issue(A, L_MSTAGE, XN)
    A("s_barrier")
    for ks in range(10): A.vmem(f"buffer_load_dwordx4 {v(X+4*ks,4)}, {v(T0)}, {s(SRD_X,4)}, s28 offen offset:{64*ks}", "x")
    A("s_waitcnt lgkmcnt(0)")
    epoch_to_tag(A)
    A.stamp(12)
    mod_finish(A, L_MSTAGE, L_SILU, XN)
    A.stamp(13)
    A(f"s_branch {Lj1}")
    A.label(Lnm)
    A.vm_reset()
    Lx, Lst = A.newlabel("xwait"), A.newlabel("stats")
    A(f"s_cmp_lg_u32 {s(SW)}, 0\ns_cbranch_scc1 {Lx}")
    A(f"buffer_load_dwordx4 {v(XN,4)}, {v(VL16)}, {s(SRD_B,4)}, 0 offen\nbuffer_load_dwordx4 {v(XN+4,4)}, {v(VL16)}, {s(SRD_B,4)}, 0 offen offset:1024")
    A.label(Lx)
    A("s_barrier")
    for ks in range(10): A.vmem(f"buffer_load_dwordx4 {v(X+4*ks,4)}, {v(T0)}, {s(SRD_X,4)}, s28 offen offset:{64*ks}", "x")
    A(f"s_cmp_ge_u32 {s(SW)}, 4\ns_cbranch_scc1 {Lw47}")
    Lx2 = A.newlabel("nosilu")
    A(f"s_cmp_lg_u32 {s(SW)}, 0\ns_cbranch_scc1 {Lx2}")
    A("s_waitcnt vmcnt(10)")
    mod_silu_small(A, L_SILU2, XN, XN+12)
    A.label(Lx2)
    A("s_waitcnt vmcnt(0) lgkmcnt(0)")
    epoch_to_tag(A)
    A(f"s_branch {Lst}")
    A.label(Lj1)
    A("s_waitcnt vmcnt(1)")
    A(f"s_branch {Lst}")
    A.label(Lw47)
    A(f"s_and_b32 s29, {s(SNG)}, 1\ns_lshl_b32 s29, s29, 3\ns_add_u32 s29, s29, {KA['wk']}")
    A(f"s_load_dwordx2 {s(SRD_B,2)}, s[0:1], s29\ns_mov_b32 {s(SRD_B+2)}, {NBYTES['wk']}\ns_mov_b32 {s(SRD_B+3)}, 0x20000")
    srd_from_kernarg(A, SRD_A, "wq")
    f16_src_voffset(A, VSRC, VL, 1280, T1, T2)
    A("s_waitcnt lgkmcnt(0)")
    epoch_to_tag(A)
    publish_xid(A, 28, T1, T2)
    A(f"s_mul_i32 s29, {s(SW4)}, 6144\ns_add_u32 s30, s29, {L_WKV}")
    A(f"s_mov_b32 m0, s30")
    for q in range(4): dma(A, VL16, SRD_B, "s29", None, 0, "wkv", imm=1024*q, set_m0=False)
    A("s_add_u32 s29, s29, 4096\ns_add_u32 m0, s30, 4096")
    for q in range(2): dma(A, VL16, SRD_B, "s29", None, 0, "wkv", imm=1024*q, set_m0=False)
    A(f"s_mov_b32 s29, 24576\ns_mov_b32 m0, {L_WKV + 24576}")
    dma(A, VL16, SRD_B, "s29", None, 0, "wkv", set_m0=False)
    A(f"s_mul_i32 s31, {s(SW4)}, {5*32*1280}\ns_mul_i32 s29, {s(SNG)}, 160\ns_add_u32 s31, s31, s29\ns_mul_i32 s45, {s(SW4)}, 25600")
    def wq_dma(f):
        if f and f % 5 == 0: A(f"s_add_u32 s31, s31, {32*1280 - 128}")
        elif f: A("s_add_u32 s31, s31, 32")
        dma(A, VSRC, SRD_A, "s31", 45, L_WQ + f*1024, "wq")
    NQ1 = OPT["nq1"]
    for f in range(NQ1): wq_dma(f)
    A.vm_wait("x")
    A.label(Lst)
    A.stamp(5)
    for r in range(4): A(f"v_mov_b32 {v(ONES+r)}, 0x3f803f80")
    S1, S2 = KVACC, KVACC+4
    for ks in range(10):
        A(f"v_mfma_f32_16x16x32_bf16 {v(S1,4)}, {v(ONES,4)}, {v(X+4*ks,4)}, {'0' if ks == 0 else v(S1,4)}")
        A(f"v_mfma_f32_16x16x32_bf16 {v(S2,4)}, {v(X+4*ks,4)}, {v(X+4*ks,4)}, {'0' if ks == 0 else v(S2,4)}")
    for r in range(40):
        unpack_lo(A, XN+2*r, X+r); unpack_hi(A, XN+2*r+1, X+r)
    A(f"v_and_b32 {v(T0)}, 3, {v(VL)}")
    for r in range(1, 4): A(f"v_cmp_eq_u32 vcc, {r}, {v(T0)}\nv_cndmask_b32 {v(S2)}, {v(S2)}, {v(S2+r)}, vcc")
    A(f"v_mov_b32 {v(S1+1)}, {v(S2)}")
    A(f"v_and_b32 {v(T1)}, 15, {v(VL)}\nv_lshlrev_b32 {v(T2)}, 3, {v(T1)}\ns_lshl_b32 s28, {s(SW)}, 7\ns_add_u32 s28, s28, {L_LNX}\nv_add_u32 {v(T3)}, s28, {v(T2)}")
    A(f"v_lshrrev_b32 {v(T1)}, 2, {v(T1)}\nv_lshrrev_b32 {v(T0)}, 4, {v(VL)}\nv_cmp_eq_u32 vcc, {v(T0)}, {v(T1)}")
    A("s_and_saveexec_b64 s[32:33], vcc")
    A(f"ds_write_b64 {v(T3)}, {v(S1,2)}")
    A("s_mov_b64 exec, -1")
    A(f"s_lshl_b32 s28, s26, 7\ns_add_u32 s28, s28, {L_LNX}\nv_add_u32 {v(T2)}, s28, {v(T2)}")
    A("s_waitcnt lgkmcnt(0)\ns_barrier")
    A(f"ds_read_b64 {v(S1,2)}, {v(T2)}\nds_read_b64 {v(S2,2)}, {v(T2)} offset:512\ns_waitcnt lgkmcnt(0)")
    A(f"v_add_f32 {v(S1)}, {v(S1)}, {v(S2)}\nv_add_f32 {v(S1+1)}, {v(S1+1)}, {v(S2+1)}")
    A(f"v_mul_f32 {v(S1)}, 0xbacccccd, {v(S1)}\nv_mul_f32 {v(S1+1)}, 0x3acccccd, {v(S1+1)}")
    A(f"v_fma_f32 {v(S1+1)}, -{v(S1)}, {v(S1)}, {v(S1+1)}\nv_max_f32 {v(S1+1)}, 0, {v(S1+1)}\nv_add_f32 {v(S1+1)}, 0x3727c5ac, {v(S1+1)}")
    A(f"v_rsq_f32 {v(S2)}, {v(S1+1)}\nv_mul_f32 {v(S2+2)}, {v(S1)}, {v(S2)}\nv_mov_b32 {v(S2+1)}, {v(S2)}\nv_mov_b32 {v(S2+3)}, {v(S2+2)}")
    Lp47, Lj2 = A.newlabel("p47"), A.newlabel("j2")
    def normalise(extra=None):
        for r in range(40):
            A(f"v_pk_fma_f32 {v(XN+2*r,2)}, {v(XN+2*r,2)}, {v(S2,2)}, {v(S2+2,2)}")
            if extra and r % 3 == 2: extra()
    keep = list(A.vm)
    A(f"s_cmp_ge_u32 {s(SW)}, 4\ns_cbranch_scc1 {Lp47}")
    normalise()
    A.stamp(6)
    A(f"v_lshrrev_b32 {v(T0)}, 2, {v(VL)}\nv_and_b32 {v(T1)}, 3, {v(VL)}\nv_lshlrev_b32 {v(T2)}, 7, {v(T0)}\nv_lshl_add_u32 {v(T2)}, {v(T1)}, 4, {v(T2)}")
    A(f"s_lshl_b32 s28, {s(SW)}, 11\ns_add_u32 s28, s28, {SY_MODG}\ns_lshl_b32 s29, {s(SW)}, 9\ns_add_u32 s29, s29, {SY_MODG + 64*128}")
    poll_granules(A, [(MS, T2, "s28", None, 0), (MS+4, T2, "s29", "0xffff", 0)], 25)
    A.stamp(7)
    for q, sbase, ex in ((0, 4, None), (4, 2, "0xffff")):
        A(f"s_lshl_b32 s28, {s(SW)}, {sbase}\ns_add_u32 s28, s28, {64 if q else 0}\nv_add_u32 {v(T2)}, s28, {v(T0)}")
        A(f"v_subrev_u32 {v(T3)}, 40, {v(T2)}\nv_cmp_gt_u32 vcc, 40, {v(T2)}\nv_cndmask_b32 {v(T2)}, {v(T3)}, {v(T2)}, vcc\nv_cndmask_b32 {v(T3)}, 0, 8, vcc")
        A(f"v_lshlrev_b32 {v(T2)}, 7, {v(T2)}\nv_lshl_add_u32 {v(T2)}, {v(T1)}, 5, {v(T2)}\nv_add_u32 {v(T2)}, {v(T2)}, {v(T3)}\nv_add_u32 {v(T2)}, {L_MODSA}, {v(T2)}")
        unpack_lo(A, MS+8, MS+q); unpack_hi(A, MS+9, MS+q); unpack_lo(A, MS+10, MS+q+2); unpack_hi(A, MS+11, MS+q+2)
        if ex: A(f"s_mov_b64 exec, {ex}")
        A(f"ds_write_b64 {v(T2)}, {v(MS+8,2)}\nds_write_b64 {v(T2)}, {v(MS+10,2)} offset:16")
        if ex: A("s_mov_b64 exec, -1")
    A(f"s_branch {Lj2}")
    A.label(Lp47)
    A.vm = keep
    st = dict(f=NQ1)
    def more():
        if st["f"] < 25: wq_dma(st["f"]); st["f"] += 1
    normalise(more)
    assert st["f"] == 25
    A.vm_wait("wkv")
    A.label(Lj2)
    attn.qaddr(A, QADR, (T0, T1, T2, T3, 11, 12))
    A(f"v_lshrrev_b32 {v(T0)}, 4, {v(VL)}\nv_lshlrev_b32 {v(T3)}, 6, {v(T0)}\ns_mul_i32 s28, s27, 2560\ns_add_u32 s28, s28, {L_MODSA}\nv_add_u32 {v(T3)}, s28, {v(T3)}")
    A(f"s_mul_i32 s28, s27, 51200\nv_lshl_add_u32 {v(VTR)}, {v(VL)}, 3, s28")
    A(f"v_lshlrev_b32 {v(T0)}, 3, {v(T0)}\nv_bfe_u32 {v(T1)}, {v(VL)}, 2, 2\nv_add_u32 {v(T0)}, {v(T0)}, {v(T1)}\nv_mul_u32_u24 {v(T0)}, 40, {v(T0)}")
    A(f"v_and_b32 {v(T1)}, 3, {v(VL)}\nv_lshl_add_u32 {v(T0)}, {v(T1)}, 3, {v(T0)}\ns_mul_i32 s28, s27, 12800\ns_add_u32 s28, s28, {L_WKV}\nv_add_u32 {v(VTK)}, s28, {v(T0)}")
    A("s_waitcnt lgkmcnt(0)\ns_barrier")
    A.stamp(8)
    def msread(p): A(f"ds_read_b128 {v(MS+4*(p%8),4)}, {v(T3)} offset:{(p//4)*256 + (p%4)*16}")
    for p in range(7): msread(p)
    for p in range(40):
        if p + 7 < 40: msread(p + 7)
        A(f"s_waitcnt lgkmcnt({min(7, 39-p)})")
        m = MS + 4*(p % 8)
        A(f"v_pk_fma_f32 {v(XN+2*p,2)}, {v(XN+2*p,2)}, {v(m,2)}, {v(m+2,2)}")
        if p: A(f"v_cvt_pk_bf16_f32 {v(X+p-1)}, {v(XN+2*p-2)}, {v(XN+2*p-1)}")
    A(f"v_cvt_pk_bf16_f32 {v(X+39)}, {v(XN+78)}, {v(XN+79)}")
    A.stamp(9)
    Lnokv, Lv, Lkvw = A.newlabel("nokv"), A.newlabel("vproj"), A.newlabel("kvw")
    A(f"s_lshr_b32 s28, {s(SNG)}, 1\ns_cmp_lg_u32 s28, s26\ns_cselect_b32 s38, 0, 1\ns_cbranch_scc1 {Lnokv}")
    def kvread(ks):
        for n in range(2):
            for ip in range(2):
                A(f"ds_read_b64_tr_b16 {v(AF+8*(ks%4)+4*n+2*ip,2)}, {v(VTK)} offset:{(32*ks+4*ip)*40+32*n}")
    def kvproj(swap):
        for ks in range(3): kvread(ks)
        for ks in range(10):
            if ks + 3 < 10: kvread(ks + 3)
            A(f"s_waitcnt lgkmcnt({4*min(3, 9-ks)})")
            for n in range(2):
                w, h = v(AF+8*(ks%4)+4*n, 4), v(X+4*ks, 4)
                a_, b_ = (h, w) if swap else (w, h)
                A(f"v_mfma_f32_16x16x32_bf16 {v(KVACC+4*n,4)}, {a_}, {b_}, {'0' if ks == 0 else v(KVACC+4*n,4)}")
    A(f"s_bitcmp1_b32 {s(SNG)}, 0\ns_cbranch_scc1 {Lv}")
    kvproj(False)
    A(f"s_branch {Lkvw}")
    A.label(Lv)
    kvproj(True)
    A.label(Lkvw)
    A(f"s_cmp_eq_u32 s27, 0\ns_cbranch_scc1 {Lnokv}")
    A(f"v_add_u32 {v(T0)}, {L_KVRED}, {v(VL16)}")
    A(f"ds_write_b128 {v(T0)}, {v(KVACC,4)}\nds_write_b128 {v(T0)}, {v(KVACC+4,4)} offset:1024")
    A.label(Lnokv)
    Lc = A.newlabel("barc")
    A(f"s_cmp_lt_u32 {s(SW)}, 4\ns_cbranch_scc1 {Lc}\ns_waitcnt vmcnt(0)")
    A.label(Lc)
    A("s_waitcnt lgkmcnt(0)\ns_barrier")
    A.stamp(10)
    Lq, Lvs, Lvd = A.newlabel("qproj"), A.newlabel("vstore"), A.newlabel("kvdone")
    A(f"s_sub_u32 s28, s38, s27\ns_cmp_lg_u32 s28, 1\ns_cselect_b32 s38, 0, 1\ns_cbranch_scc1 {Lq}")
    A(f"v_add_u32 {v(T0)}, {L_KVRED}, {v(VL16)}")
    A(f"ds_read_b128 {v(MS,4)}, {v(T0)}\nds_read_b128 {v(MS+4,4)}, {v(T0)} offset:1024")
    A(f"s_lshl_b32 s28, {s(STG)}, 1\ns_lshr_b32 s29, s26, 1\ns_add_u32 s28, s28, s29\ns_mul_i32 s28, s28, 2560\ns_add_u32 s28, s28, {WS_KV3}\ns_and_b32 s29, s26, 1")
    A(f"v_lshrrev_b32 {v(T0)}, 4, {v(VL)}\nv_and_b32 {v(T1)}, 15, {v(VL)}\ns_waitcnt lgkmcnt(0)")
    for r in range(8): A(f"v_add_f32 {v(KVACC+r)}, {v(KVACC+r)}, {v(MS+r)}")
    for r in range(4): A(f"v_cvt_pk_bf16_f32 {v(MS+r)}, {v(KVACC+2*r)}, {v(KVACC+2*r+1)}")
    A(f"s_bitcmp1_b32 {s(SNG)}, 0\ns_cbranch_scc1 {Lvs}")
    A(f"s_lshl_b32 s29, s29, 4\nv_bfe_u32 {v(T2)}, {v(T1)}, 2, 1\nv_lshl_add_u32 {v(T2)}, {v(T2)}, 3, s29\nv_lshrrev_b32 {v(T3)}, 3, {v(T1)}\nv_lshl_add_u32 {v(T2)}, {v(T3)}, 2, {v(T2)}")
    A(f"v_and_b32 {v(T1)}, 3, {v(T1)}\nv_add_u32 {v(T1)}, {v(T1)}, {v(T2)}\nv_lshlrev_b32 {v(T3)}, 3, {v(T1)}\nv_lshlrev_b32 {v(T2)}, 4, {v(T1)}")
    A(f"v_lshrrev_b32 {v(T1)}, 1, {v(T0)}\nv_lshl_add_u32 {v(T2)}, {v(T1)}, 9, {v(T2)}\nv_and_b32 {v(T0)}, 1, {v(T0)}\nv_lshl_add_u32 {v(T2)}, {v(T0)}, 3, {v(T2)}")
    A(f"buffer_store_dwordx2 {v(MS,2)}, {v(T2)}, {s(SRD_WS,4)}, s28 offen{SC}")
    A("s_mov_b64 exec, 0xffff")
    A(f"buffer_store_dwordx2 {v(MS+2,2)}, {v(T3)}, {s(SRD_WS,4)}, s28 offen offset:1024{SC}")
    A(f"s_mov_b64 exec, -1\ns_branch {Lvd}")
    A.label(Lvs)
    A(f"s_mul_i32 s29, s29, 640\nv_lshrrev_b32 {v(T2)}, 1, {v(T0)}\nv_mul_u32_u24 {v(T2)}, 320, {v(T2)}\nv_lshl_add_u32 {v(T2)}, {v(T1)}, 4, {v(T2)}")
    A(f"v_and_b32 {v(T0)}, 1, {v(T0)}\nv_lshl_add_u32 {v(T2)}, {v(T0)}, 3, {v(T2)}\nv_add_u32 {v(T2)}, s29, {v(T2)}")
    A(f"buffer_store_dwordx2 {v(MS,2)}, {v(T2)}, {s(SRD_WS,4)}, s28 offen offset:1280{SC}")
    A("s_mov_b32 exec_lo, 0xf000f\ns_mov_b32 exec_hi, 0xf000f")
    A(f"buffer_store_dwordx2 {v(MS+2,2)}, {v(T2)}, {s(SRD_WS,4)}, s28 offen offset:1536{SC}")
    A("s_mov_b64 exec, -1")
    A.label(Lvd)
    A.label(Lq)
    def qread(ks):
        for i in range(5):
            for ip in range(2):
                A(f"ds_read_b64_tr_b16 {v(AF+20*(ks&1)+4*i+2*ip,2)}, {v(VTR)} offset:{(5*ks+i)*1024+512*ip}")
    A(f"s_lshl_b32 s28, {s(STG)}, 3\ns_add_u32 s28, s28, {s(SNG)}\ns_lshl_b32 s28, s28, 7\ns_add_u32 s28, s28, {SY_FL1}")
    qread(0)
    for ks in range(10):
        if ks == OPT["flag_ks"]:
            L = A.newlabel("nofl1")
            A(f"s_cmp_eq_u32 s38, 0\ns_cbranch_scc1 {L}\ns_waitcnt vmcnt(0)")
            set_flag(A, "s28", T0, T1, local=False)
            A.label(L)
        for i in range(5):
            if ks + 1 < 10:
                for ip in range(2):
                    A(f"ds_read_b64_tr_b16 {v(AF+20*((ks+1)&1)+4*i+2*ip,2)}, {v(VTR)} offset:{(5*(ks+1)+i)*1024+512*ip}")
                A("s_waitcnt lgkmcnt(10)")
            else: A(f"s_waitcnt lgkmcnt({2*(4-i)})")
            A(f"v_mfma_f32_16x16x32_bf16 {v(QACC+4*i,4)}, {v(AF+20*(ks&1)+4*i,4)}, {v(X+4*ks,4)}, {'0' if ks == 0 else v(QACC+4*i,4)}")
    A.stamp(11)
    Llo, Le = A.newlabel("qlo"), A.newlabel("qe")
    A(f"s_mul_i32 s28, s26, 5120\ns_add_u32 s28, s28, {L_QRED}\nv_add_u32 {v(T0)}, s28, {v(VL16)}")
    A(f"s_cmp_lt_u32 {s(SW)}, 4\ns_cbranch_scc1 {Llo}")
    for i in range(5): A(f"ds_write_b128 {v(T0)}, {v(QACC+4*i,4)} offset:{1024*i}")
    A("s_waitcnt lgkmcnt(0)\ns_barrier")
    A(f"v_mov_b32 {v(T1)}, {L_FLAG}\nv_mov_b32 {v(T2)}, 0\nds_write_b32 {v(T1)}, {v(T2)}\nds_write_b32 {v(T1)}, {v(T2)} offset:16\ns_waitcnt lgkmcnt(0)")
    A(f"s_branch {Le}")
    A.label(Llo)
    A("s_barrier")
    for i in range(5): A(f"ds_read_b128 {v(AF+4*i,4)}, {v(T0)} offset:{1024*i}")
    for i in range(5):
        A(f"s_waitcnt lgkmcnt({4-i})")
        for r in range(4): A(f"v_add_f32 {v(QACC+4*i+r)}, {v(QACC+4*i+r)}, {v(AF+4*i+r)}")
    attn.qwrite(A, QACC, QADR, AF)
    A("s_waitcnt lgkmcnt(0)")
    A.label(Le)
    A("s_barrier")
    A.stamp(14)

R1, R2 = 44, 220
L_STG, L_AUX = 4*SLOT, L_XTRA
SJOB, SUNIT, SDST, SX, SKVS, SLW, SPF, SPF2 = 40, 47, 32, 33, 6, 7, 25, 26
JOB_NONE, JOB_W, JOB_GU = 0, 1, 2

def last_arriver(A, Lskip, t0, t1, count):
    A(f"v_mov_b32 {v(t0)}, {L_CNT}\nv_mov_b32 {v(t1)}, 1\ns_mov_b64 exec, 1\nds_add_rtn_u32 {v(t1)}, {v(t0)}, {v(t1)}\ns_mov_b64 exec, -1\ns_waitcnt lgkmcnt(0)")
    A(f"v_readfirstlane_b32 s28, {v(t1)}\ns_cmp_lg_u32 s28, {count}\ns_cbranch_scc1 {Lskip}")

class Side:
    def __init__(self, A, stream):
        self.A = A; self.S = stream
    def kv_issue(self, c):
        A = self.A
        sl = (c % 4) * SLOT
        dma(A, VL16, SRD_WS, s(SKVS), SLW, sl, f"kv{c}", sc=True)
        for i in range(1, 4): dma(A, VL16, SRD_WS, s(SKVS), SLW, sl, f"kv{c}", imm=1024*i, set_m0=False, sc=True)
        A(f"s_add_u32 s28, {s(SKVS)}, 4096")
        dma(A, VL16, SRD_WS, "s28", SLW, sl + 4096, f"kv{c}", sc=True)
        A(f"s_add_u32 {s(SKVS)}, {s(SKVS)}, {SLOT}")
    def is_strip(self, Lno):
        self.A(f"s_cmp_lt_u32 {s(SM)}, 20\ns_cbranch_scc1 {Lno}\ns_cmp_ge_u32 {s(SM)}, 60\ns_cbranch_scc1 {Lno}")
    def first(self, A):
        T = R2
        A.vm_reset()
        A(f"s_sub_u32 {s(SUNIT)}, {s(SSTRIP)}, 80\ns_cmp_lt_u32 {s(SUNIT)}, 136\ns_cselect_b32 {s(SJOB)}, {JOB_W}, {JOB_NONE}")
        A(f"s_cmp_lt_u32 {s(SM)}, 20\ns_cselect_b32 {s(SJOB)}, {JOB_GU}, {s(SJOB)}\ns_cselect_b32 {s(SUNIT)}, {s(SSTRIP)}, {s(SUNIT)}")
        A(f"s_sub_u32 s28, {s(SSTRIP)}, 160\ns_cmp_ge_u32 {s(SM)}, 60\ns_cselect_b32 {s(SJOB)}, {JOB_GU}, {s(SJOB)}\ns_cselect_b32 {s(SUNIT)}, s28, {s(SUNIT)}")
        Lw, Ljoin = A.newlabel("fw"), A.newlabel("fjoin")
        A(f"s_cmp_lg_u32 {s(SJOB)}, {JOB_GU}\ns_cbranch_scc1 {Lw}")
        srd_from_kernarg(A, SRD_A, "wg"); srd_from_kernarg(A, SRD_B, "wu")
        f16_src_voffset(A, T+2, VL, 3072, T, T+1)
        A(f"s_mul_i32 {s(SX)}, {s(SW4)}, {160*3072}\ns_lshl_b32 s28, {s(SUNIT)}, 5\ns_add_u32 {s(SX)}, {s(SX)}, s28")
        A(f"s_mul_i32 s29, {s(SUNIT)}, 10923\ns_lshr_b32 s29, s29, 16\ns_mul_i32 s30, s29, 6\ns_sub_u32 s30, {s(SUNIT)}, s30")
        A(f"s_mul_i32 s29, s29, {GU_BLOCK}\ns_add_u32 s29, s29, {WS_WGU}")
        A("s_lshr_b32 s31, s30, 1\ns_mul_i32 s31, s31, 81920\ns_and_b32 s28, s30, 1\ns_lshl_b32 s28, s28, 10\ns_add_u32 s31, s31, s28")
        A(f"s_mul_i32 s28, {s(SW4)}, 20480\ns_add_u32 s31, s31, s28\ns_add_u32 s31, s31, s29\ns_add_u32 {s(SDST)}, s31, 6144")
        A(f"s_lshl_b32 s30, s30, 10\ns_add_u32 s38, s30, s29")
        A(f"s_branch {Ljoin}")
        A.label(Lw)
        A(f"s_min_u32 s27, {s(SUNIT)}, 135\ns_lshr_b32 s27, s27, 1\ns_cmp_lt_u32 s27, 20")
        A(f"s_cselect_b32 s28, {KA['wo']}, {KA['wd']}\ns_load_dwordx2 {s(SRD_A,2)}, s[0:1], s28")
        A(f"s_mov_b32 {s(SRD_A+2)}, {NBYTES['wd']}\ns_cselect_b32 {s(SRD_A+2)}, {NBYTES['wo']}, {s(SRD_A+2)}\ns_mov_b32 {s(SRD_A+3)}, 0x20000")
        A(f"s_mov_b32 s29, {WS_WD}\ns_cselect_b32 s29, {WS_WO}, s29\ns_cselect_b32 s30, 20, 48\ns_cselect_b32 s31, 0, 20\ns_sub_u32 s31, s27, s31")
        A(f"s_mul_i32 s28, s31, 21846\ns_lshr_b32 s28, s28, 16\ns_mul_i32 {s(SX)}, s28, 3\ns_sub_u32 {s(SX)}, s31, {s(SX)}\ns_lshl_b32 {s(SX)}, {s(SX)}, 4\ns_add_u32 {s(SX)}, {s(SX)}, s28")
        A(f"s_cmp_lt_u32 s27, 20\ns_cselect_b32 {s(SX)}, s31, {s(SX)}")
        A(f"s_and_b32 s28, {s(SUNIT)}, 1\ns_lshl_b32 s28, s28, 2\ns_add_u32 s28, s28, {s(SW4)}")
        A(f"s_mul_i32 s30, s30, s28\ns_add_u32 s30, s30, {s(SX)}\ns_mul_i32 s30, s30, 5120\ns_add_u32 {s(SDST)}, s30, s29")
        A(f"s_mul_i32 s31, s31, {32*1280}\ns_mul_i32 s28, s28, 160\ns_add_u32 {s(SX)}, s31, s28")
        f16_src_voffset(A, T+2, VL, 1280, T, T+1)
        A.label(Ljoin)
        A(f"v_lshrrev_b32 {v(T)}, 3, {v(VL)}\nv_lshlrev_b32 {v(T)}, 5, {v(T)}\nv_and_b32 {v(T+1)}, 7, {v(VL)}\nv_add_lshl_u32 {v(T)}, {v(T)}, {v(T+1)}, 7")
        A(f"s_lshl_b32 s28, {s(SW4)}, 10\ns_add_u32 s28, s28, {SY_FL1}")
        A(f"s_mul_i32 {s(SLW)}, {s(SW4)}, 5120\ns_add_u32 {s(SKVS)}, {s(SLW)}, {WS_KV3}")
        poll_flags(A, 64, T, T+1, "s28", 29)
        A("s_waitcnt lgkmcnt(0)")
        for c in range(4): self.kv_issue(c)
        A.vm_wait("kv0")
    def side_issue(self, A):
        T = R2
        keep = list(A.vm)
        Lng, Lnw = A.newlabel("ng"), A.newlabel("nw")
        A(f"s_mul_i32 s27, {s(SW4)}, 10240\ns_add_u32 s27, s27, {L_STG}")
        A(f"s_cmp_lg_u32 {s(SJOB)}, {JOB_GU}\ns_cbranch_scc1 {Lng}")
        for pp in range(5):
            dma(A, T+2, SRD_A, s(SX), 27, pp*2048, "u")
            dma(A, T+2, SRD_B, s(SX), 27, pp*2048+1024, "u")
            if pp < 4: A(f"s_add_u32 {s(SX)}, {s(SX)}, {32*3072}")
        A(f"s_branch {Lnw}")
        A.label(Lng)
        A(f"s_mul_i32 s27, {s(SW4)}, 5120\ns_add_u32 s27, s27, {L_STG}")
        Lskip = A.newlabel("nounit")
        A(f"s_cmp_lg_u32 {s(SJOB)}, {JOB_W}\ns_cbranch_scc1 {Lskip}")
        for f in range(5):
            dma(A, T+2, SRD_A, s(SX), 27, f*1024, "u")
            if f < 4: A(f"s_add_u32 {s(SX)}, {s(SX)}, 32")
        A.label(Lskip)
        self.is_strip(Lnw)
        srd_from_kernarg(A, SRD_A, "wmod")
        f16_src_voffset(A, T+2, VL, 7680, T, T+1)
        A(f"s_lshl_b32 s28, {s(SSTRIP)}, 5\ns_mul_i32 s29, {s(SW4)}, {5*32*7680}\ns_add_u32 s28, s28, s29\ns_mul_i32 s27, {s(SW4)}, 5120\ns_add_u32 s27, s27, {L_STG + 20480}")
        A("s_waitcnt lgkmcnt(0)")
        for f in range(5):
            dma(A, T+2, SRD_A, "s28", 27, f*1024, "m")
            if f < 4: A(f"s_add_u32 s28, s28, {32*7680}")
        A.label(Lnw)
        A.vm = keep
    def block(self, A, c):
        T = R2
        ph = A.phase; A.phase = "blk"
        A.stamp(2*c)
        A.vm_reset()
        if c == 0:
            A("s_waitcnt vmcnt(0)")
            self.side_issue(A)
        if c == 1:
            self.kv_issue(4)
        if c == 2:
            A("s_waitcnt vmcnt(5)")
            self.b1(A)
            self.strip_part(A)
            self.kv_issue(5)
        if c == 3:
            A("s_waitcnt vmcnt(5)")
            self.b2(A)
            self.kv_issue(6)
        if c == 4:
            self.b3(A)
            self.kv_issue(7)
            self.ready(A)
            self.touch(A, SPF, 32)
            if OPT["touch"] >= 1: self.touch(A, SPF2, 64)
        if c == 5:
            self.b4(A)
            self.S.init(); self.S.issue(0); self.S.issue(1)
            if OPT["touch"] >= 2: self.touch(A, SPF2, 64)
        if c == 6:
            if OPT["touch"] >= 3: self.touch(A, SPF2, 64)
        A.stamp(2*c+1)
        A.phase = ph
        A("s_waitcnt lgkmcnt(0)\ns_barrier")
    def ready(self, A):
        T = R2
        A(f"s_lshr_b32 s28, {s(SNG)}, 2\ns_mul_i32 s29, {s(SFB)}, 6\nv_lshlrev_b32 {v(T)}, 1, {v(VL)}\nv_add_u32 {v(T)}, s28, {v(T)}\nv_add_u32 {v(T)}, 96, {v(T)}")
        A(f"s_sub_u32 s29, s29, 20\nv_add_u32 {v(T+1)}, s29, {v(VL)}\nv_cmp_gt_u32 vcc, 20, {v(VL)}\nv_cndmask_b32 {v(T)}, {v(T+1)}, {v(T)}, vcc\nv_lshlrev_b32 {v(T)}, 2, {v(T)}")
        A(f"s_mov_b32 s28, {SY_FLP}")
        poll_flags(A, 26, T, T+1, "s28", 29)
        A(f"s_and_b32 s29, {s(STG)}, 3\ns_lshl_b32 s29, s29, 2\ns_add_u32 s29, s29, {s(SW4)}\ns_mul_i32 s29, s29, 3840")
        A(f"s_mul_i32 s30, {s(SNG)}, 102400\ns_add_u32 s29, s29, s30\ns_add_u32 {s(SPF)}, s29, {WS_WO + 40960}")
        A(f"s_and_b32 s29, {s(STG)}, 2\ns_lshl_b32 s29, s29, 1\ns_add_u32 s29, s29, {s(SW4)}\ns_mul_i32 s29, s29, {8192*max(1, OPT['touch'])}")
        A(f"s_mul_i32 s30, {s(SFB)}, {GU_BLOCK}\ns_add_u32 s29, s29, s30\ns_add_u32 {s(SPF2)}, s29, {WS_WGU}")
        A(f"v_lshlrev_b32 {v(T+2)}, 7, {v(VL)}")
    def touch(self, A, sreg, lanes):
        T = R2
        if lanes < 64: A(f"s_mov_b64 exec, {hex((1 << lanes) - 1)}")
        A(f"buffer_load_dword {v(T+3)}, {v(T+2)}, {s(SRD_WS,4)}, {s(sreg)} offen{SC}")
        if lanes < 64: A("s_mov_b64 exec, -1")
        A(f"s_add_u32 {s(sreg)}, {s(sreg)}, {128*lanes}")
    def b1(self, A):
        T = R2
        Lw, Ld, Lns = A.newlabel("b1w"), A.newlabel("b1d"), A.newlabel("b1ns")
        A(f"s_cmp_eq_u32 {s(SJOB)}, {JOB_NONE}\ns_cbranch_scc1 {Ld}")
        A(f"s_cmp_lg_u32 {s(SJOB)}, {JOB_GU}\ns_cbranch_scc1 {Lw}")
        self.gu_addr(A, T)
        A(f"s_mov_b32 s31, {s(SDST)}")
        for half in range(2):
            for j in range(5):
                ss = 5*half + j; o = (ss >> 1)*2048 + (ss & 1)*256
                A(f"ds_read_b64_tr_b16 {v(T+4+4*j,2)}, {v(T)} offset:{o}\nds_read_b64_tr_b16 {v(T+6+4*j,2)}, {v(T)} offset:{o+512}")
            for j in range(5):
                ss = 5*half + j
                A(f"s_waitcnt lgkmcnt({2*(4-j)})")
                A(f"buffer_store_dwordx4 {v(T+4+4*j,4)}, {v(VL16)}, {s(SRD_WS,4)}, s31 offen offset:{(ss&1)*2048}{SC}")
                if ss & 1: A("s_add_u32 s31, s31, 4096")
            if half == 0: A("s_nop 1")
        A(f"s_branch {Ld}")
        A.label(Lw)
        A(f"s_mul_i32 s28, {s(SW4)}, 5120\ns_add_u32 s28, s28, {L_STG}\nv_lshl_add_u32 {v(T)}, {v(VL)}, 3, s28")
        F = [R1, R1+4, R1+8, R1+12, T+4]
        for f in range(5):
            A(f"ds_read_b64_tr_b16 {v(F[f],2)}, {v(T)} offset:{f*1024}\nds_read_b64_tr_b16 {v(F[f]+2,2)}, {v(T)} offset:{f*1024+512}")
        for f in range(5):
            A(f"s_waitcnt lgkmcnt({2*(4-f)})")
            if f == 4: A(f"s_add_u32 {s(SDST)}, {s(SDST)}, 4096")
            A(f"buffer_store_dwordx4 {v(F[f],4)}, {v(VL16)}, {s(SRD_WS,4)}, {s(SDST)} offen offset:{(f%4)*1024}{SC}")
        A.label(Ld)
    def gu_addr(self, A, d):
        A(f"v_bfe_u32 {v(d+1)}, {v(VL)}, 4, 1\nv_lshlrev_b32 {v(d)}, 10, {v(d+1)}")
        for (pos, w, sh) in ((5, 1, 7), (2, 2, 5), (0, 1, 4), (1, 1, 3)):
            A(f"v_bfe_u32 {v(d+1)}, {v(VL)}, {pos}, {w}\nv_lshl_add_u32 {v(d)}, {v(d+1)}, {sh}, {v(d)}")
        A(f"s_mul_i32 s28, {s(SW4)}, 10240\ns_add_u32 s28, s28, {L_STG}\nv_add_u32 {v(d)}, s28, {v(d)}")
    def b2(self, A):
        Ld, Lns = A.newlabel("b2d"), A.newlabel("b2ns")
        A(f"s_cmp_eq_u32 {s(SJOB)}, {JOB_NONE}\ns_cbranch_scc1 {Ld}")
        last_arriver(A, Ld, R2, R2+1, 3)
        A(f"s_cmp_eq_u32 {s(SJOB)}, {JOB_GU}\ns_cselect_b32 s28, 0, 96\ns_add_u32 s28, s28, {s(SUNIT)}\ns_lshl_b32 s28, s28, 2\ns_add_u32 s28, s28, {SY_FLP}")
        set_flag(A, "s28", R2, R2+1, local=False)
        A.label(Ld)
        self.is_strip(Lns)
        A(f"s_cmp_lg_u32 {s(SW)}, 5\ns_cbranch_scc1 {Lns}")
        T = R2
        A(f"v_and_b32 {v(T)}, 48, {v(VL)}\nv_add_u32 {v(T)}, {L_AUX}, {v(T)}")
        for w in range(4): A(f"ds_read_b128 {v(R1+4*w,4)}, {v(T)} offset:{64*w}")
        A("s_waitcnt lgkmcnt(0)")
        for r in range(4): A(f"v_add_f32 {v(R1+r)}, {v(R1+r)}, {v(R1+4+r)}\nv_add_f32 {v(R1+8+r)}, {v(R1+8+r)}, {v(R1+12+r)}")
        for r in range(4): A(f"v_add_f32 {v(R1+r)}, {v(R1+r)}, {v(R1+8+r)}")
        mod_publish(A, R1, R1+4, T)
        A.label(Lns)
    def strip_part(self, A):
        T = R2
        L = A.newlabel("nopart")
        self.is_strip(L)
        A(f"v_lshrrev_b32 {v(T)}, 4, {v(VL)}\ns_mul_i32 s28, {s(SW4)}, 320\ns_add_u32 s28, s28, {L_SILU2}\nv_lshl_add_u32 {v(T)}, {v(T)}, 4, s28")
        A(f"s_mul_i32 s28, {s(SW4)}, 5120\ns_add_u32 s28, s28, {L_STG + 20480}\nv_lshl_add_u32 {v(T+1)}, {v(VL)}, 3, s28")
        A("s_nop 1")
        W = [R1, R1+4, R1+8, R1+12, T+8]
        B = [T+12+4*f for f in range(5)]
        for f in range(5):
            A(f"ds_read_b128 {v(B[f],4)}, {v(T)} offset:{64*f}\nds_read_b64_tr_b16 {v(W[f],2)}, {v(T+1)} offset:{1024*f}\nds_read_b64_tr_b16 {v(W[f]+2,2)}, {v(T+1)} offset:{1024*f+512}")
        for f in range(5):
            A(f"s_waitcnt lgkmcnt({3*(4-f)})")
            A(f"v_mfma_f32_16x16x32_bf16 {v(T+32,4)}, {v(W[f],4)}, {v(B[f],4)}, {'0' if f == 0 else v(T+32,4)}")
        A(f"v_lshrrev_b32 {v(T)}, 4, {v(VL)}\ns_lshl_b32 s28, {s(SW4)}, 6\ns_add_u32 s28, s28, {L_AUX}\nv_lshl_add_u32 {v(T)}, {v(T)}, 4, s28")
        A("s_mov_b32 exec_lo, 0x10001\ns_mov_b32 exec_hi, 0x10001")
        A(f"ds_write_b128 {v(T)}, {v(T+32,4)}")
        A("s_mov_b64 exec, -1")
        A.label(L)
    def b3(self, A):
        T = R2
        Ld = A.newlabel("b3d")
        A(f"s_cmp_lg_u32 {s(SJOB)}, {JOB_GU}\ns_cbranch_scc1 {Ld}")
        keep = list(A.vm)
        A(f"v_lshrrev_b32 {v(T)}, 2, {v(VL)}\nv_and_b32 {v(T+1)}, 3, {v(VL)}\nv_lshlrev_b32 {v(T)}, 7, {v(T)}\nv_lshl_add_u32 {v(T)}, {v(T+1)}, 4, {v(T)}")
        A(f"s_mul_i32 s28, {s(SW4)}, 1280\ns_add_u32 s28, s28, {SY_MODG + 120*128}\ns_add_u32 s29, s28, {40*128}")
        poll_granules(A, [(T+4, T, "s28", "0xffffffffff", 0), (T+8, T, "s29", "0xffffffffff", 0)], 27)
        A(f"s_lshl_b32 s28, {s(SW4)}, 10\ns_add_u32 s28, s28, {L_AUX}\nv_lshl_add_u32 {v(T)}, {v(VL)}, 3, s28")
        A(f"v_mov_b32 {v(T+5)}, {v(T+6)}\nv_mov_b32 {v(T+9)}, {v(T+10)}\nds_write_b64 {v(T)}, {v(T+4,2)} offset:512\nds_write_b64 {v(T)}, {v(T+8,2)}")
        A(f"v_and_b32 {v(T+2)}, 1, {v(VL)}\nv_lshlrev_b32 {v(T+2)}, 9, {v(T+2)}\nv_lshrrev_b32 {v(T+1)}, 5, {v(VL)}\nv_lshl_add_u32 {v(T+2)}, {v(T+1)}, 4, {v(T+2)}\nv_add_u32 {v(T+2)}, s28, {v(T+2)}")
        self.gu_addr(A, T)
        A("s_waitcnt lgkmcnt(0)")
        ACC = R1
        def rd(ss):
            o = (ss >> 1)*2048 + (ss & 1)*256; b = T + 4 + 8*(ss % 4)
            A(f"ds_read_b64_tr_b16 {v(b,2)}, {v(T)} offset:{o}\nds_read_b64_tr_b16 {v(b+2,2)}, {v(T)} offset:{o+512}\nds_read_b128 {v(b+4,4)}, {v(T+2)} offset:{32*ss}")
        for ss in range(3): rd(ss)
        for ss in range(10):
            if ss + 3 < 10: rd(ss + 3)
            A(f"s_waitcnt lgkmcnt({3*min(3, 9-ss)})")
            b = T + 4 + 8*(ss % 4)
            A(f"v_mfma_f32_32x32x16_bf16 {v(ACC,16)}, {v(b,4)}, {v(b+4,4)}, {'0' if ss == 0 else v(ACC,16)}")
        RB = L_AUX + 4096
        A(f"v_and_b32 {v(T)}, 31, {v(VL)}\nv_lshrrev_b32 {v(T+1)}, 5, {v(VL)}\nv_lshlrev_b32 {v(T+1)}, 4, {v(T+1)}\nv_lshl_add_u32 {v(T+1)}, {v(T)}, 7, {v(T+1)}")
        A(f"s_lshl_b32 s28, {s(SW4)}, 8\ns_add_u32 s28, s28, {RB}\nv_add_u32 {v(T+1)}, s28, {v(T+1)}")
        A("s_mov_b32 exec_lo, 3\ns_mov_b32 exec_hi, 3")
        for q in range(4): A(f"ds_write_b128 {v(T+1)}, {v(ACC+4*q,4)} offset:{32*q}")
        A("s_mov_b64 exec, -1")
        A.label(Ld)
        A.vm = keep
    def b4(self, A):
        T = R2 + 8
        Ld = A.newlabel("b4d")
        RB = L_AUX + 4096
        A(f"s_cmp_lg_u32 {s(SJOB)}, {JOB_GU}\ns_cbranch_scc1 {Ld}\ns_cmp_lg_u32 {s(SW)}, 7\ns_cbranch_scc1 {Ld}")
        A(f"v_lshrrev_b32 {v(T)}, 1, {v(attn.VT32)}\nv_add_u32 {v(T)}, {RB}, {v(T)}")
        for w in range(4):
            A(f"ds_read_b32 {v(T+4+w)}, {v(T)} offset:{256*w}\nds_read_b32 {v(T+8+w)}, {v(T)} offset:{256*w+128}")
        A("s_waitcnt lgkmcnt(0)")
        a_, b_ = T+4, T+8
        for b in (a_, b_):
            A(f"v_add_f32 {v(b)}, {v(b)}, {v(b+1)}\nv_add_f32 {v(b+2)}, {v(b+2)}, {v(b+3)}\nv_add_f32 {v(b)}, {v(b)}, {v(b+2)}")
        O = T + 12
        A(f"v_cvt_pk_bf16_f32 {v(O)}, {v(a_)}, {v(a_)}\nv_cvt_pk_bf16_f32 {v(O+2)}, {v(b_)}, {v(b_)}")
        A(f"v_and_b32 {v(a_+1)}, 0xffff0000, {v(O)}\nv_sub_f32 {v(a_+1)}, {v(a_)}, {v(a_+1)}\nv_and_b32 {v(b_+1)}, 0xffff0000, {v(O+2)}\nv_sub_f32 {v(b_+1)}, {v(b_)}, {v(b_+1)}")
        A(f"v_cvt_pk_bf16_f32 {v(O+1)}, {v(a_+1)}, {v(b_)}\nv_cvt_pk_bf16_f32 {v(O+2)}, {v(b_)}, {v(b_+1)}\nv_mov_b32 {v(O+3)}, 0")
        A(f"v_cmp_gt_u32 vcc, 32, {v(VL)}")
        for r in range(3): A(f"v_cndmask_b32 {v(O+r)}, 0, {v(O+r)}, vcc")
        A(f"buffer_store_dwordx4 {v(O,4)}, {v(VL16)}, {s(SRD_WS,4)}, s38 offen{SC}\ns_waitcnt vmcnt(0)")
        A(f"s_lshl_b32 s28, {s(SUNIT)}, 2\ns_add_u32 s28, s28, {SY_FLP + 232*4}")
        set_flag(A, "s28", T, T+1, local=False)
        A.label(Ld)

def mod_silu_small(A, silu, RC, RA):
    A("s_mov_b32 s29, 0xbfb8aa3b")
    for h in range(2):
        for r in range(4):
            unpack_lo(A, RA+2*r, RC+4*h+r); unpack_hi(A, RA+2*r+1, RC+4*h+r)
        for i in range(8): A(f"v_mul_f32 {v(RA+8+i)}, s29, {v(RA+i)}")
        for i in range(8): A(f"v_exp_f32 {v(RA+8+i)}, {v(RA+8+i)}")
        for i in range(8): A(f"v_add_f32 {v(RA+8+i)}, 1.0, {v(RA+8+i)}")
        for i in range(8): A(f"v_rcp_f32 {v(RA+8+i)}, {v(RA+8+i)}")
        for i in range(8): A(f"v_mul_f32 {v(RA+i)}, {v(RA+i)}, {v(RA+8+i)}")
        for r in range(4): A(f"v_cvt_pk_bf16_f32 {v(RC+4*h+r)}, {v(RA+2*r)}, {v(RA+2*r+1)}")
    A(f"v_add_u32 {v(RC+8)}, {silu}, {v(VL16)}")
    A(f"ds_write_b128 {v(RC+8)}, {v(RC,4)}\nds_write_b128 {v(RC+8)}, {v(RC+4,4)} offset:1024")
```

```python
from fcommon import *
import attn, post, front

NAME = "adaLN_cond__grouped_kv_mqa__glu_gated_geglu__prompt_kernel"; GRID = 256; BLOCK = 512; LDS = LDS_ALL
def gen():
    A = Asm()
    A(f"s_cmp_ge_u32 s2, {GRID}\ns_cbranch_scc1 Lf_end")
    load_ptr(A, "ws", 4); load_ptr(A, "x", 12); load_ptr(A, "wmod", front.SRD_A); load_ptr(A, "c", front.SRD_B)
    wave_id(A, SW, 1)
    ids(A); front.job_ids(A)
    A(f"v_and_b32 v1, 63, v0\nv_lshlrev_b32 v2, 4, v1\ns_sub_u32 s43, {s(SW)}, 4")
    A("s_waitcnt lgkmcnt(0)")
    read_epoch(A, 4, 6)
    make_srd(A, SRD_WS, 4, WS_TOP); make_srd(A, SRD_X, 12, NBYTES["x"])
    make_srd(A, front.SRD_A, front.SRD_A, NBYTES["wmod"]); make_srd(A, front.SRD_B, front.SRD_B, NBYTES["c"])
    A("v_mov_b32 v10, 0")
    A.phase = "front"
    front.front(A)
    A.phase = "attn"
    S = post.Stream(A, post.VL16, 43)
    side = front.Side(A, S)
    attn.attention(A, side.first, side.block)
    A.phase = "post"
    post.lane_consts2(A)
    A(f"s_cmp_lt_u32 {s(SW)}, 4\ns_cbranch_scc1 Lf_comp")
    A.vm_reset()
    for n in (2, 3, 4): S.issue(n)
    post.loader_tail(A, S, 5)
    A("s_endpgm")
    A.label("Lf_comp")
    front.srd_from_kernarg(A, SRD_OUT, "out")
    post.p3(A); post.p4(A); post.p5(A)
    post.update_epoch(A, 7, 8)
    A.label("Lf_end")
    A("s_endpgm")
    return A, 256, 256
```

```python
from fcommon import *
from k4 import C1, C2
from front import poll_granules, srd_from_kernarg
L_GB = L_FLAG + 64

NCH = 29
OPT = dict(x0=8, pfwd=True)
class Stream:
    SSRC, SLDS, ST = 44, 45, 46
    def __init__(self, A, vlane16, s_w4):
        self.A = A; self.vl = vlane16; self.w4 = s_w4
    def init(self):
        A = self.A
        A(f"s_mul_i32 {s(self.SLDS)}, {s(self.w4)}, 5120")
    def base(self, n):
        A = self.A
        if n == 0:
            A(f"s_mul_i32 {s(self.SSRC)}, {s(SNG)}, 102400\ns_add_u32 {s(self.SSRC)}, {s(self.SSRC)}, {WS_WO}")
        elif n == 5:
            A(f"s_mul_i32 {s(self.SSRC)}, {s(SFB)}, {GU_BLOCK}\ns_add_u32 {s(self.SSRC)}, {s(self.SSRC)}, {WS_WGU}")
            A(f"s_min_u32 {s(self.ST)}, {s(self.w4)}, 2\ns_lshl_b32 {s(self.ST)}, {s(self.ST)}, 11\ns_add_u32 {s(self.ST+1)}, {s(self.ST)}, {s(self.SSRC)}")
            dma(A, self.vl, SRD_WS, s(self.ST+1), self.ST, L_XTRA, "c5", sc=True)
            dma(A, self.vl, SRD_WS, s(self.ST+1), self.ST, L_XTRA, "c5", imm=1024, set_m0=False, sc=True)
            A(f"s_add_u32 {s(self.SSRC)}, {s(self.SSRC)}, 6144")
        elif n == 17:
            A(f"s_mul_i32 {s(self.SSRC)}, {s(SNG)}, 245760\ns_add_u32 {s(self.SSRC)}, {s(self.SSRC)}, {WS_WD}")
        else:
            A(f"s_add_u32 {s(self.SSRC)}, {s(self.SSRC)}, {SLOT}")
            return
        A(f"s_add_u32 {s(self.SSRC)}, {s(self.SSRC)}, {s(self.SLDS)}")
    def issue(self, n):
        A = self.A
        self.base(n)
        sl = slot_of(n)
        dma(A, self.vl, SRD_WS, s(self.SSRC), self.SLDS, sl, f"c{n}", sc=True)
        for i in range(1, 4): dma(A, self.vl, SRD_WS, s(self.SSRC), self.SLDS, sl, f"c{n}", imm=1024*i, set_m0=False, sc=True)
        A(f"s_add_u32 {s(self.ST)}, {s(self.SSRC)}, 4096")
        dma(A, self.vl, SRD_WS, s(self.ST), self.SLDS, sl + 4096, f"c{n}", sc=True)
    def check(self, soff, n, vt):
        A = self.A
        L = A.newlabel("chkok")
        A.vm_wait("chk")
        A(f"s_mov_b64 exec, {hex((1 << n) - 1)}\nv_cmp_ne_u32 vcc, {s(STAG)}, {v(vt+1)}\ns_mov_b64 exec, -1")
        A(f"s_cbranch_vccz {L}")
        keep = list(A.vm)
        poll_flags(A, n, vt, vt+1, soff, self.ST)
        A.vm = keep
        A.label(L)
    def run(self, issued, sched, checks=None, vt=None, hooks=None):
        A = self.A
        nxt = issued
        checks = checks or {}
        for n in range(NCH):
            assert nxt > n
            A.vm_wait(f"c{n}")
            if n in checks: self.check(checks[n][0], checks[n][1], vt)
            if n in (0, 5, 17): A.stamp({0: 5, 5: 6, 17: 7}[n])
            A("s_barrier")
            if n + 1 in checks:
                A(f"s_mov_b64 exec, {hex((1 << checks[n+1][1]) - 1)}")
                A.vmem(f"buffer_load_dword {v(vt+1)}, {v(vt)}, {s(SRD_WS,4)}, {checks[n+1][0]} offen{SC}", "chk")
                A("s_mov_b64 exec, -1")
            lim = min(NCH, sched.get(n, n + 7))
            assert lim <= n + 7
            while nxt < lim: self.issue(nxt); nxt += 1
            if hooks and n in hooks: hooks[n]()

def gemm16(A, n0, KS, VB, NB, VA, VACC, vb3, after=None):
    def aread(ks):
        off = slot_of(n0 + ks // 4) + (ks % 4) * 5120
        for i in range(5):
            o = off + 1024*i
            A(f"ds_read_b128 {v(VA+20*(ks&1)+4*i,4)}, {v(vb3[o//61440])} offset:{o%61440}")
    A("s_barrier")
    aread(0)
    for ks in range(KS):
        boundary = ks + 1 < KS and (ks + 1) % 4 == 0
        if ks + 1 < KS:
            if boundary: A("s_waitcnt lgkmcnt(0)\ns_barrier")
            aread(ks + 1)
        for i in range(5):
            lg = "" if boundary else f"lgkmcnt({(5 if ks+1 < KS else 0) + 4 - i})"
            if i == 0: A.vm_wait(f"b{ks}", lg)
            elif lg: A(f"s_waitcnt {lg}")
            A(f"v_mfma_f32_16x16x32_bf16 {v(VACC+4*i,4)}, {v(VA+20*(ks&1)+4*i,4)}, {v(VB+4*(ks%NB),4)}, {'0' if ks == 0 else v(VACC+4*i,4)}")
        if after: after(ks)

VL, VL16, VB1, VB2 = 1, 2, 3, 4
ST16 = 24

def lane_consts(A):
    A(f"v_and_b32 {v(VL)}, 63, v0\nv_lshlrev_b32 {v(VL16)}, 4, {v(VL)}")
    A(f"v_add_u32 {v(VB1)}, 61440, {v(VL16)}\nv_add_u32 {v(VB2)}, 122880, {v(VL16)}")

def lane_consts2(A):
    A(f"v_add_u32 {v(VB1)}, 61440, {v(VL16)}\nv_add_u32 {v(VB2)}, 122880, {v(VL16)}")

def epi_addrs(A, VNAT, VM, t0):
    A(f"v_lshrrev_b32 {v(t0)}, 4, {v(VL)}\nv_and_b32 {v(VNAT)}, 15, {v(VL)}\nv_mul_u32_u24 {v(VNAT)}, 1280, {v(VNAT)}")
    A(f"v_lshl_add_u32 {v(VNAT)}, {v(t0)}, 3, {v(VNAT)}\nv_lshlrev_b32 {v(VM)}, 4, {v(t0)}")

def p3(A, wait_flags=True):
    VNAT, VM, VT, VT2 = 5, 6, 7, 8
    VA, VACC, VX, VGATE, VCB, VB = 12, 52, 72, 84, 104, 124
    A.vm_reset()
    A(f"s_lshl_b32 {s(ST16)}, {s(STG)}, 2\ns_add_u32 {s(ST16)}, {s(ST16)}, {s(SW)}")
    epi_addrs(A, VNAT, VM, VT)
    A(f"s_mul_i32 s25, {s(ST16)}, 20480\ns_mul_i32 s26, {s(SNG)}, 160\ns_add_u32 s26, s26, s25\ns_add_u32 s25, s25, {WS_O}")
    for i in range(5):
        A(f"buffer_load_dwordx2 {v(VX+2*i,2)}, {v(VNAT)}, {s(SRD_X,4)}, s26 offen offset:{32*i}")
    A(f"s_mul_i32 s27, {s(SNG)}, 640\ns_add_u32 s27, s27, {SY_MODG + 80*128}\ns_add_u32 s28, s27, {80*128}\ns_add_u32 s29, s27, {120*128}")
    G = VB
    poll_granules(A, [(G + 20*j + 4*i, VM, so, None, 128*i) for j, so in enumerate(("s27", "s28", "s29")) for i in range(5)], 25)
    for j, dst in ((0, VGATE), (1, VCB)):
        for i in range(5):
            g = G + 20*j + 4*i
            unpack_lo(A, dst+4*i, g); unpack_hi(A, dst+4*i+1, g); unpack_lo(A, dst+4*i+2, g+2); unpack_hi(A, dst+4*i+3, g+2)
    A(f"s_mul_i32 s27, {s(SW)}, 160\ns_add_u32 s27, s27, {L_GB}\nv_lshrrev_b32 {v(VT)}, 1, {v(VM)}\nv_add_u32 {v(VT)}, s27, {v(VT)}")
    for i in range(5):
        g = G + 40 + 4*i
        A(f"v_mov_b32 {v(g+1)}, {v(g+2)}\nds_write_b64 {v(VT)}, {v(g,2)} offset:{32*i}")
    A(f"s_mul_i32 s25, {s(ST16)}, 20480\ns_add_u32 s25, s25, {WS_O}")
    if wait_flags:
        A(f"s_lshl_b32 s29, {s(STG)}, 8\ns_add_u32 s29, s29, {SY_FL2}\nv_lshlrev_b32 {v(VT)}, 2, {v(VL)}")
        poll_flags(A, 64, VT, VT2, "s29", 30)
    A.stamp(5)
    def bload(ks):
        if ks % 4 == 0 and ks: A("s_add_u32 s25, s25, 4096")
        A.vmem(f"buffer_load_dwordx4 {v(VB+4*ks,4)}, {v(VL16)}, {s(SRD_WS,4)}, s25 offen offset:{(ks%4)*1024}{SC}", f"b{ks}")
    for ks in range(20): bload(ks)
    gemm16(A, 0, 20, VB, 20, VA, VACC, (VL16, VB1, VB2))
    A.stamp(6)
    A.vm_drain()
    XF = VA
    for i in range(5):
        for q in range(2):
            unpack_lo(A, XF+4*i+2*q, VX+2*i+q); unpack_hi(A, XF+4*i+2*q+1, VX+2*i+q)
    for r in range(20): A(f"v_fma_f32 {v(XF+r)}, {v(VACC+r)}, {v(VGATE+r)}, {v(XF+r)}")
    for r in range(10): A(f"v_cvt_pk_bf16_f32 {v(VX+r)}, {v(XF+2*r)}, {v(XF+2*r+1)}")
    for r in range(10):
        unpack_lo(A, XF+2*r, VX+r); unpack_hi(A, XF+2*r+1, VX+r)
    for r in range(20): A(f"v_mul_f32 {v(VACC+r)}, {v(XF+r)}, {v(VCB+r)}")
    Y = VGATE
    for r in range(10): A(f"v_cvt_pk_bf16_f32 {v(Y+r)}, {v(VACC+2*r)}, {v(VACC+2*r+1)}")
    A(f"s_lshr_b32 s29, {s(ST16)}, 1\ns_mul_i32 s29, s29, 40960\ns_mul_i32 s30, {s(SNG)}, 5120\ns_add_u32 s29, s29, s30")
    A(f"s_and_b32 s30, {s(ST16)}, 1\ns_lshl_b32 s30, s30, 8\ns_add_u32 s29, s29, s30\ns_add_u32 s29, s29, {WS_Y}\ns_add_u32 s30, s29, 4096")
    A(f"v_lshrrev_b32 {v(VM)}, 5, {v(VL)}\nv_lshlrev_b32 {v(VM)}, 9, {v(VM)}\nv_and_b32 {v(VT)}, 15, {v(VL)}\nv_lshl_add_u32 {v(VM)}, {v(VT)}, 4, {v(VM)}")
    A(f"v_bfe_u32 {v(VT2)}, {v(VL)}, 4, 1\nv_lshl_add_u32 {v(VM)}, {v(VT2)}, 3, {v(VM)}")
    for i in range(5):
        A.vmem(f"buffer_store_dwordx2 {v(Y+2*i,2)}, {v(VM)}, {s(SRD_WS,4)}, {'s29' if i < 4 else 's30'} offen offset:{1024*(i%4)}{SC}", "y")
    S0, S1, T0, T1 = VCB, VCB+1, VCB+2, VCB+3
    A(f"v_add_f32 {v(S0)}, {v(XF)}, {v(XF+1)}\nv_mul_f32 {v(S1)}, {v(XF)}, {v(XF)}\nv_fmac_f32 {v(S1)}, {v(XF+1)}, {v(XF+1)}")
    for r in range(2, 20):
        A(f"v_add_f32 {v(S0)}, {v(S0)}, {v(XF+r)}\nv_fmac_f32 {v(S1)}, {v(XF+r)}, {v(XF+r)}")
    sum_halves16(A, S0, T0); sum_halves16(A, S1, T1)
    sum_halves32(A, S0, T0); sum_halves32(A, S1, T1)
    A(f"s_lshl_b32 s29, {s(ST16)}, 10\ns_lshl_b32 s30, {s(SNG)}, 3\ns_add_u32 s29, s29, s30\ns_add_u32 s29, s29, {WS_STATS}")
    A(f"v_lshlrev_b32 {v(VM)}, 6, {v(VT)}")
    A("s_mov_b64 exec, 0xffff")
    A.vmem(f"buffer_store_dwordx2 {v(S0,2)}, {v(VM)}, {s(SRD_WS,4)}, s29 offen{SC}", "y")
    A("s_mov_b64 exec, -1")
    A(f"s_mul_i32 s29, {s(SW)}, 2560\ns_add_u32 s29, s29, {L_X1}\nv_lshl_add_u32 {v(VM)}, {v(VL)}, 3, s29")
    for i in range(5): A(f"ds_write_b64 {v(VM)}, {v(VX+2*i,2)} offset:{512*i}")
    A(f"s_lshr_b32 s29, {s(ST16)}, 1\ns_lshl_b32 s29, s29, 5\ns_lshl_b32 s30, {s(SNG)}, 1\ns_add_u32 s29, s29, s30\ns_and_b32 s30, {s(ST16)}, 1\ns_add_u32 s29, s29, s30")
    A(f"s_lshl_b32 s29, s29, 2\ns_add_u32 s29, s29, {SY_FL3}")
    A.vm_drain()
    set_flag(A, "s29", VT, VT2)
    A.stamp(7)

def p4(A):
    VST = 0
    XB, K1, K2, IR2, T = 6, 5, 10, 11, 12
    VA, ACC, XR = 16, 32, 96
    A.vm_reset()
    A(f"s_lshr_b32 s25, {s(STG)}, 1\ns_lshl_b32 s25, s25, 2\ns_add_u32 s25, s25, {s(SW)}")
    A(f"s_lshl_b32 s29, s25, 7\ns_add_u32 s29, s29, {SY_FL3}\nv_lshlrev_b32 {v(T)}, 2, {v(VL)}")
    poll_flags(A, 16, T, T+1, "s29", 30)
    A.stamp(8)
    ST = ACC + 32
    A(f"v_and_b32 {v(T)}, 31, {v(VL)}\nv_lshlrev_b32 {v(T+1)}, 6, {v(T)}")
    A(f"s_lshl_b32 s26, s25, 11\ns_add_u32 s26, s26, {WS_STATS}")
    for q in range(4):
        A.vmem(f"buffer_load_dwordx4 {v(ST+4*q,4)}, {v(T+1)}, {s(SRD_WS,4)}, s26 offen offset:{16*q}{SC}", "st")
    A(f"s_mul_i32 s26, s25, 40960\ns_add_u32 s26, s26, {WS_Y}")
    def xload(k):
        if k and k % 4 == 0: A("s_add_u32 s26, s26, 4096")
        A.vmem(f"buffer_load_dwordx4 {v(XR+4*k,4)}, {v(VL16)}, {s(SRD_WS,4)}, s26 offen offset:{(k%4)*1024}{SC}", f"x{k}")
    X0 = OPT["x0"]
    for k in range(X0): xload(k)
    A(f"v_cmp_gt_u32 s[30:31], 32, {v(VL)}")
    A(f"v_lshrrev_b32 {v(T+1)}, 4, {v(T)}\nv_mul_u32_u24 {v(T+1)}, 49152, {v(T+1)}\nv_and_b32 {v(T)}, 15, {v(T)}\nv_lshl_add_u32 {v(T+1)}, {v(T)}, 4, {v(T+1)}")
    A(f"v_lshrrev_b32 {v(T)}, 5, {v(VL)}\nv_lshl_add_u32 {v(VST)}, {v(T)}, 8, {v(T+1)}")
    A(f"s_mul_i32 s27, s25, 98304\ns_lshl_b32 s28, {s(SFB)}, 10\ns_add_u32 s27, s27, s28\ns_add_u32 s27, s27, {WS_HM}")
    A(f"s_lshl_b32 s28, s25, 8\ns_lshl_b32 s29, {s(SFB)}, 2\ns_add_u32 s28, s28, s29\ns_add_u32 s28, s28, {SY_FL4}")
    def stats(A):
        for q in range(2):
            A(f"v_add_f32 {v(ST+q)}, {v(ST+q)}, {v(ST+2+q)}")
            for z in range(1, 4):
                A(f"v_add_f32 {v(ST+4*z+q)}, {v(ST+4*z+q)}, {v(ST+4*z+2+q)}")
            A(f"v_add_f32 {v(ST+q)}, {v(ST+q)}, {v(ST+4+q)}\nv_add_f32 {v(ST+8+q)}, {v(ST+8+q)}, {v(ST+12+q)}\nv_add_f32 {v(ST+q)}, {v(ST+q)}, {v(ST+8+q)}")
        MU, VAR, RR, RHO = ST, ST+1, ST+2, ST+3
        A(f"v_mul_f32 {v(MU)}, 0xbacccccd, {v(MU)}")
        A(f"v_mul_f32 {v(VAR)}, 0x3acccccd, {v(VAR)}")
        A(f"v_fma_f32 {v(VAR)}, -{v(MU)}, {v(MU)}, {v(VAR)}\nv_max_f32 {v(VAR)}, 0, {v(VAR)}\nv_add_f32 {v(IR2)}, 0x3727c5ac, {v(VAR)}")
        A(f"v_rsq_f32 {v(RR)}, {v(IR2)}\nv_sqrt_f32 {v(RHO)}, {v(IR2)}")
        A(f"v_mul_f32 {v(K1)}, {fbits(C1)}, {v(RR)}\nv_mul_f32 {v(K2)}, {v(RR)}, {v(RR)}\nv_mul_f32 {v(K2)}, {v(K2)}, {v(RR)}\nv_mul_f32 {v(K2)}, {fbits(C2)}, {v(K2)}")
        A(f"v_cvt_pk_bf16_f32 {v(ST+4)}, {v(MU)}, {v(RHO)}")
        A(f"v_lshlrev_b32 {v(ST+5)}, 16, {v(ST+4)}\nv_and_b32 {v(ST+6)}, 0xffff0000, {v(ST+4)}")
        A(f"v_sub_f32 {v(ST+5)}, {v(MU)}, {v(ST+5)}\nv_sub_f32 {v(ST+6)}, {v(RHO)}, {v(ST+6)}")
        A(f"v_cvt_pk_bf16_f32 {v(XB)}, {v(MU)}, {v(ST+5)}")
        A(f"v_cvt_pk_bf16_f32 {v(XB+2)}, {v(ST+6)}, {v(RHO)}")
        A(f"v_cndmask_b32 {v(XB)}, 0, {v(XB)}, s[30:31]\nv_cndmask_b32 {v(XB+1)}, 0, {v(ST+4)}, s[30:31]\nv_cndmask_b32 {v(XB+2)}, 0, {v(XB+2)}, s[30:31]\nv_mov_b32 {v(XB+3)}, 0")
    SA = Asm(); stats(SA); stat_ops = SA.lines
    seq = [(p, k) for p in range(3) for k in range(41)]
    vb3 = (VL16, VB1, VB2)
    def lds_off(p, k, i):
        if k == 40: return L_XTRA + (2*p + i) * 1024
        gs = 40*p + k
        return slot_of(5 + gs // 10) + ((gs % 10)*2 + i) * 1024
    def aread(n):
        p, k = seq[n]
        return [f"ds_read_b128 {v(VA+8*(n&1)+4*i,4)}, {v(vb3[lds_off(p,k,i)//61440])} offset:{lds_off(p,k,i)%61440}" for i in range(2)]
    def epilogue(p):
        ops = []
        for i in range(2):
            acc = ACC + 32*(p & 1) + 16*i
            for e0 in range(0, 8, 2):
                E = (e0, e0+1)
                for j, e in enumerate(E): ops.append(f"v_mul_f32 {v(T+j)}, {v(acc+e)}, {v(acc+e)}")
                for j, e in enumerate(E): ops.append(f"v_fma_f32 {v(T+j)}, {v(T+j)}, {v(K2)}, {v(K1)}")
                for j, e in enumerate(E): ops.append(f"v_mul_f32 {v(T+j)}, {v(T+j)}, {v(acc+e)}")
                for j, e in enumerate(E): ops.append(f"v_exp_f32 {v(T+j)}, {v(T+j)}")
                ops.append(f"v_mul_f32 {v(acc+8+e0)}, {v(acc+8+e0)}, {v(acc+e0)}")
                for j, e in enumerate(E): ops.append(f"v_fma_f32 {v(T+j)}, {v(T+j)}, {v(IR2)}, {v(IR2)}")
                for j, e in enumerate(E): ops.append(f"v_rcp_f32 {v(T+j)}, {v(T+j)}")
                ops.append(f"v_mul_f32 {v(acc+9+e0)}, {v(acc+9+e0)}, {v(acc+1+e0)}")
                for j, e in enumerate(E): ops.append(f"v_mul_f32 {v(acc+8+e)}, {v(acc+8+e)}, {v(T+j)}")
                ops.append(f"v_cvt_pk_bf16_f32 {v(acc+e0//2)}, {v(acc+8+e0)}, {v(acc+9+e0)}")
            ops.append(("store", f"buffer_store_dwordx4 {v(acc,4)}, {v(VST)}, {s(SRD_WS,4)}, s27 offen offset:{512*i}{SC}"))
        ops.append("s_add_u32 s27, s27, 16384")
        return ops
    def emit(op):
        if isinstance(op, tuple): A.vmem(op[1], "out")
        else: A(op)
    A("s_barrier")
    A.stamp(9)
    for r in aread(0): A(r)
    pend = list(stat_ops)
    xn = X0
    for n, (p, k) in enumerate(seq):
        if k == 0 and p > 0: pend = epilogue(p - 1); A.stamp(9 + p)
        if p == 2 and k == 8:
            A.vm_drain(); set_flag(A, "s28", T+2, T+3); A("s_add_u32 s28, s28, 64")
        boundary = False
        if n + 1 < len(seq):
            p2, k2 = seq[n+1]
            if k2 != 40 and (40*p2 + k2) % 10 == 0:
                A("s_waitcnt lgkmcnt(0)\ns_barrier"); boundary = True
            rd = aread(n + 1)
        else: rd = []
        acc = ACC + 32*(p & 1)
        for i in range(2):
            if rd: A(rd[i])
            lg = "" if boundary else f"lgkmcnt({(i+1 if rd else 0) + 1 - i})"
            if i == 0 and p == 0 and k < 40: A.vm_wait(f"x{k}", lg)
            elif lg: A(f"s_waitcnt {lg}")
            b = v(XR+4*k, 4) if k < 40 else v(XB, 4)
            A(f"v_mfma_f32_32x32x16_bf16 {v(acc+16*i,16)}, {v(VA+8*(n&1)+4*i,4)}, {b}, {'0' if k == 0 else v(acc+16*i,16)}")
            if p == 0 and xn < 40: xload(xn); xn += 1
            if k >= (3 if p else 20):
                for _ in range(3 if p else 2):
                    if pend: emit(pend.pop(0))
        assert not (k == 40 and pend)
    A.stamp(12)
    A.vm_drain(); set_flag(A, "s28", T+2, T+3); A("s_add_u32 s28, s28, 64")
    A(f"s_mul_i32 s25, {s(ST16)}, 49152\ns_add_u32 s25, s25, {WS_HM}")
    nb = 0
    for j, op in enumerate(epilogue(2)):
        emit(op)
        if j % 8 == 0 and nb < 16: p5_bload(A, nb); nb += 1
    assert nb == 16
    A.stamp(13)

P5VB, P5NB = 128, 32
def p5_bload(A, ks):
    if ks % 4 == 0 and ks: A("s_add_u32 s25, s25, 4096")
    A.vmem(f"buffer_load_dwordx4 {v(P5VB+4*(ks%P5NB),4)}, {v(VL16)}, {s(SRD_WS,4)}, s25 offen offset:{(ks%4)*1024}{SC}", f"b{ks}")

def p5(A):
    VNAT, VM, VT, VT2 = 5, 6, 7, 8
    VA, VACC, VX, VGATE = 64, 104, 12, 24
    epi_addrs(A, VNAT, VM, VT)
    A(f"s_mul_i32 s26, {s(ST16)}, 20480\ns_mul_i32 s27, {s(SNG)}, 160\ns_add_u32 s26, s26, s27")
    A(f"s_mul_i32 s29, {s(SW)}, 2560\ns_add_u32 s29, s29, {L_X1}\nv_lshl_add_u32 {v(VT)}, {v(VL)}, 3, s29")
    for i in range(5): A(f"ds_read_b64 {v(VX+2*i,2)}, {v(VT)} offset:{512*i}")
    A(f"s_mul_i32 s29, {s(SW)}, 160\ns_add_u32 s29, s29, {L_GB}\nv_lshrrev_b32 {v(VM)}, 1, {v(VM)}\nv_add_u32 {v(VM)}, s29, {v(VM)}")
    for i in range(5): A(f"ds_read_b64 {v(VGATE+20+2*i,2)}, {v(VM)} offset:{32*i}")
    A("s_waitcnt lgkmcnt(0)")
    for i in range(5):
        for q in range(2):
            unpack_lo(A, VGATE+4*i+2*q, VGATE+20+2*i+q); unpack_hi(A, VGATE+4*i+2*q+1, VGATE+20+2*i+q)
    A.stamp(14)
    st = dict(nb=16)
    def after(ks):
        if ks == 3:
            A.vm_wait("out"); set_flag(A, "s28", VT, VT2)
        if 4 <= ks < 12 or 16 <= ks < 24:
            for _ in range(2): p5_bload(A, st["nb"]); st["nb"] += 1
    gemm16(A, 17, 48, P5VB, P5NB, VA, VACC, (VL16, VB1, VB2), after)
    A.stamp(15)
    XF = VA
    for i in range(5):
        for q in range(2):
            unpack_lo(A, XF+4*i+2*q, VX+2*i+q); unpack_hi(A, XF+4*i+2*q+1, VX+2*i+q)
    for r in range(20): A(f"v_fma_f32 {v(XF+r)}, {v(VACC+r)}, {v(VGATE+r)}, {v(XF+r)}")
    for r in range(10): A(f"v_cvt_pk_bf16_f32 {v(VX+r)}, {v(XF+2*r)}, {v(XF+2*r+1)}")
    for i in range(5):
        A(f"buffer_store_dwordx2 {v(VX+2*i,2)}, {v(VNAT)}, {s(SRD_OUT,4)}, s26 offen offset:{32*i}")
    A.stamp(16)

def loader_tail(A, S, issued):
    VT = 6
    A(f"s_lshl_b32 s25, {s(STG)}, 1\ns_lshl_b32 s25, s25, 8\ns_add_u32 s25, s25, {SY_FL4}\ns_add_u32 s26, s25, 64\ns_add_u32 s27, s25, 128")
    A(f"v_and_b32 {v(VT)}, 15, {v(VL)}\nv_lshlrev_b32 {v(VT)}, 2, {v(VT)}\nv_bfe_u32 {v(VT+1)}, {v(VL)}, 4, 1\nv_lshl_add_u32 {v(VT)}, {v(VT+1)}, 8, {v(VT)}")
    A(f"s_mul_i32 s28, {s(SFB)}, 24\ns_add_u32 s28, s28, {SY_FLP + 232*4}\nv_lshlrev_b32 {v(VT+2)}, 2, {v(VL)}")
    keep = list(A.vm)
    poll_flags(A, 6, VT+2, VT+3, "s28", 29)
    sched = {5: 11, 6: 11, 7: 11}
    def pf_setup():
        A(f"s_lshr_b32 s28, {s(SNG)}, 2\ns_lshl_b32 s28, s28, 2\ns_add_u32 s28, s28, {SY_FLP + (96+40)*4}\nv_lshlrev_b32 {v(VT+2)}, 3, {v(VL)}")
        keep = list(A.vm)
        poll_flags(A, 48, VT+2, VT+3, "s28", 29)
        A.vm = []
        A(f"s_and_b32 s28, {s(STG)}, 3\ns_lshl_b32 s28, s28, 2\ns_add_u32 s28, s28, {s(S.w4)}\ns_mul_i32 s28, s28, 15360")
        A(f"s_mul_i32 s29, {s(SNG)}, 245760\ns_add_u32 s28, s28, s29\ns_add_u32 s28, s28, {WS_WD}")
        A(f"v_lshlrev_b32 {v(VT+2)}, 7, {v(VL)}")
    def pf_wd():
        A("s_mov_b64 exec, 0x7fff")
        A.vmem(f"buffer_load_dword {v(VT+3)}, {v(VT+2)}, {s(SRD_WS,4)}, s28 offen{SC}", "pf")
        A("s_mov_b64 exec, -1\ns_add_u32 s28, s28, 1920")
    hooks = {n: pf_wd for n in range(8, 16)} if OPT["pfwd"] else {}
    hooks[4] = pf_setup
    S.run(issued, sched, checks={16: ("s25", 32), 18: ("s26", 32), 21: ("s27", 32)}, vt=VT, hooks=hooks)

def update_epoch(A, vt0, vt1):
    L = A.newlabel("noepoch")
    A(f"s_or_b32 s29, s2, {s(SW)}\ns_cmp_lg_u32 s29, 0\ns_cbranch_scc1 {L}")
    A(f"s_mov_b32 s29, {SY_EPOCH}")
    set_flag(A, "s29", vt0, vt1, local=False)
    A.label(L)

NAME = "post_kernel"; GRID = 256; BLOCK = 512; LDS = LDS_ALL
def gen():
    A = Asm()
    A(f"s_cmp_ge_u32 s2, {GRID}\ns_cbranch_scc1 Lpo_end")
    load_ptr(A, "ws", 4); load_ptr(A, "x", 12); load_ptr(A, "out", 16)
    wave_id(A, SW, 1)
    ids(A); lane_consts(A)
    A("s_waitcnt lgkmcnt(0)")
    read_epoch(A, 4, 6)
    make_srd(A, SRD_WS, 4, WS_TOP); make_srd(A, SRD_X, 12, NBYTES["x"]); make_srd(A, SRD_OUT, 16, NBYTES["out"])
    A(f"s_cmp_lt_u32 {s(SW)}, 4\ns_cbranch_scc1 Lpo_comp")
    A(f"s_sub_u32 s43, {s(SW)}, 4")
    A.vm_reset()
    S = Stream(A, VL16, 43); S.init()
    for n in range(5): S.issue(n)
    A("s_waitcnt lgkmcnt(0)")
    epoch_to_tag(A)
    loader_tail(A, S, 5)
    A("s_endpgm")
    A.label("Lpo_comp")
    A("s_waitcnt lgkmcnt(0)")
    epoch_to_tag(A)
    p3(A, wait_flags=False); p4(A); p5(A)
    update_epoch(A, 7, 8)
    A.label("Lpo_end")
    A("s_endpgm")
    return A, 256, 256
```

```python
import sys, os
sys.path.insert(0, os.path.dirname(os.path.abspath(__file__)))
from emit import *
import common, fused

HEADER = open(os.path.join(os.path.dirname(os.path.abspath(__file__)), "header.txt")).read()

def kernels():
    return [(fused.NAME, fused.gen, fused.GRID, fused.BLOCK, fused.LDS)]

def build(ks=None, extra_launches=(), stamp=False):
    ks = ks or kernels()
    if len(ks) == 1:
        launch = [f"; @launch grid=({g},1,1) block=({b},1,1) lds={l}" for (n, _, g, b, l) in ks]
    else:
        launch = [f"; @launch kernel={n} grid=({g},1,1) block=({b},1,1) lds={l}" for (n, _, g, b, l) in ks]
    launch += list(extra_launches)
    text, kds = [], []
    for i, (n, gen, g, b, l) in enumerate(ks):
        A, vg, ac = gen()
        t, kd, nops = kernel_text(n, A, vg, ac, stamp=(stamp if isinstance(stamp, list) else i) if stamp else None)
        text.append(t); kds.append(kd)
    return (HEADER + "\n".join(launch) + '\n.amdgcn_target "amdgcn-amd-amdhsa--gfx950"\n.text\n' + "".join(text)
            + '.section .rodata,"a"\n' + "".join(".p2align 6\n" + kd for kd in kds))

def variants(specs):
    import importlib
    for name, sets in specs.items():
        old = []
        for (m, k, val) in sets:
            mod = importlib.import_module(m); old.append((mod, k, mod.OPT[k])); mod.OPT[k] = val
        Asm.only = ("attn", "post"); open(f"v_{name}.s", "w").write(build(stamp=True))
        Asm.only = ("front", "attn"); open(f"vf_{name}.s", "w").write(build(stamp=True))
        Asm.only = None; open(f"p_{name}.s", "w").write(build())
        for (mod, k, val) in old: mod.OPT[k] = val

if __name__ == "__main__":
    out = sys.argv[1] if len(sys.argv) > 1 else "adaLN_cond__grouped_kv_mqa__glu_gated_geglu__prompt.s"
    s_ = build()
    open(out, "w").write(s_)
    Asm.only = ("attn", "post")
    open("stamp.s", "w").write(build(stamp=True))
    open("dbg.s", "w").write(build(stamp=[0, 1, 2, 3, 4, 5, 6, 7, 8, 9, 10, 12, 14, 15]))
    Asm.only = ("blk",)
    open("stampb.s", "w").write(build(stamp=True))
    Asm.only = ("front", "attn")
    open("stampf.s", "w").write(build(stamp=True))
    open("dbgf.s", "w").write(build(stamp=[12, 13, 5, 6, 7, 8, 9, 10, 11, 14, 0, 1, 2, 3]))
    print("wrote", out, len(s_))
```
